```python
import torch

def _softmax(x, axis=-1):
    return torch.softmax(x, dim=axis)
def _gelu(x):
    return torch.nn.functional.gelu(x, approximate="tanh")
def _silu(x):
    return torch.nn.functional.silu(x)
def _sigmoid(x):
    return torch.sigmoid(x)
def _layernorm(x, axis=-1, eps=1e-5):
    m = x.mean(dim=axis, keepdim=True)
    v = x.var(dim=axis, keepdim=True, unbiased=False)
    return (x - m) / torch.sqrt(v + eps)
def _scatter_add(tgt, idx, src, axis=0):
    return tgt.clone().index_add_(axis, idx, src)
def _segment_sum(src, seg, n):
    out = torch.zeros((n,) + src.shape[1:], dtype=src.dtype)
    return out.index_add_(0, seg, src)
def _pad(x, pw):
    flat = tuple(v for pair in reversed(pw) for v in pair)
    return torch.nn.functional.pad(x, flat)

kernel_name = 'standalone__gqa_block_cached__near_ridge'

def setup_inputs():

    _w = (lambda a: (lambda t: t.to(torch.bfloat16) if t.is_floating_point() else t)(torch.as_tensor(a)))
    B, Sq, D = 8, 96, 448
    Hq, Hkv, Sk, Dh = 16, 8, 1024, 256
    assert Hq % Hkv == 0, (Hq, Hkv)
    return {
        "x": _w((lambda *s: torch.randn(*s, dtype=torch.bfloat16) * 0.8)(B, Sq, D)),
        "k_cache": _w((lambda *s: torch.randn(*s, dtype=torch.bfloat16) * 0.8)(B, Hkv, Sk, Dh)),
        "v_cache": _w((lambda *s: torch.randn(*s, dtype=torch.bfloat16) * 0.05)(B, Hkv, Sk, Dh)),
        "wq": _w((lambda *s: torch.randn(*s, dtype=torch.bfloat16) * 0.8)(D, Hq * Dh) * (D ** -0.5)),
        "wo": _w((lambda *s: torch.randn(*s, dtype=torch.bfloat16) * 0.05)(Hq * Dh, D) * ((Hq * Dh) ** -0.5)),
    }

def reference(x, k_cache, v_cache, wq, wo):
    B, Sq, D = x.shape
    Hq, Dh = 16, 256
    Hkv = k_cache.shape[1]
    rep = Hq // Hkv
    q = (lambda x, *d: x.permute(*d))((x @ wq).reshape(B, Sq, Hq, Dh), 0, 2, 1, 3)
    k = (lambda x, n, axis: torch.repeat_interleave(x, n, dim=axis))(k_cache, rep, axis=1)
    v = (lambda x, n, axis: torch.repeat_interleave(x, n, dim=axis))(v_cache, rep, axis=1)
    scores = torch.einsum("bhqd,bhkd->bhqk", q, k) * (Dh ** -0.5)
    p = _softmax(scores, axis=-1)
    o = torch.einsum("bhqk,bhkd->bhqd", p, v)
    return (lambda x, *d: x.permute(*d))(o, 0, 2, 1, 3).reshape(B, Sq, Hq * Dh) @ wo
```

```python
import sys
NAME = "standalone__gqa_block_cached__near_ridge"

def kd(name, vgpr=256, sgpr=96, accum=256):
    return f""".amdhsa_kernel {name}
  .amdhsa_next_free_vgpr {vgpr}
  .amdhsa_next_free_sgpr {sgpr}
  .amdhsa_accum_offset {accum}
  .amdhsa_group_segment_fixed_size 0
  .amdhsa_kernarg_size 64
  .amdhsa_user_sgpr_count 2
  .amdhsa_user_sgpr_kernarg_segment_ptr 1
  .amdhsa_system_sgpr_workgroup_id_x 1
.end_amdhsa_kernel
"""
def head(name):
    return f".globl {name}\n.p2align 8\n.type {name},@function\n{name}:\n"
def srd(d, b, n):
    return f"s_mov_b32 s{d}, s{b}\ns_mov_b32 s{d+1}, s{b+1}\ns_mov_b32 s{d+2}, {n}\ns_mov_b32 s{d+3}, 0x20000\n"

def gemm(name, a_slot, a_off, a_bytes, a_stride, b_slot, b_bytes, b_stride, c_slot, c_off, c_bytes, c_stride, ntn, ntiles, K):
    s = []; a = s.append
    a(head(name))
    a(f"s_cmp_ge_u32 s2, {ntiles}"); a(f"s_cbranch_scc1 {name}_end")
    a(f"s_load_dwordx2 s[4:5], s[0:1], {a_slot*8}")
    a(f"s_load_dwordx2 s[6:7], s[0:1], {b_slot*8}")
    a(f"s_load_dwordx2 s[24:25], s[0:1], {c_slot*8}")
    a(f"s_mov_b32 s20, {-(-(1<<32)//ntn)}"); a("s_mul_hi_u32 s21, s2, s20"); a(f"s_mul_i32 s22, s21, {ntn}"); a("s_sub_u32 s22, s2, s22")
    a("v_and_b32 v1, 15, v0"); a("v_lshrrev_b32 v2, 4, v0")
    a("s_waitcnt lgkmcnt(0)")
    a(srd(8, 4, a_bytes)); a(srd(12, 6, b_bytes)); a(srd(16, 24, c_bytes))
    a("s_lshl_b32 s23, s21, 4"); a("v_add_u32 v3, s23, v1"); a(f"s_mov_b32 s26, {a_stride}"); a("v_mul_lo_u32 v3, v3, s26")
    a("v_lshlrev_b32 v4, 4, v2"); a("v_add_u32 v3, v3, v4"); a(f"v_add_u32 v3, {a_off}, v3")
    a(f"s_mov_b32 s26, {8*b_stride}"); a("v_mul_lo_u32 v5, v2, s26"); a("s_lshl_b32 s27, s22, 4"); a("v_add_u32 v6, s27, v1")
    a("v_lshlrev_b32 v6, 1, v6"); a("v_add_u32 v5, v5, v6")
    for r in range(16, 20): a(f"v_mov_b32 v{r}, 0")
    a("s_mov_b32 s28, 0")
    a(f"{name}_loop:")
    a("buffer_load_dwordx4 v[8:11], v3, s[8:11], 0 offen")
    a("v_mov_b32 v7, v5")
    for j in range(8):
        a(f"buffer_load_ushort v{24 + j}, v7, s[12:15], 0 offen")
        a(f"v_add_u32 v7, {b_stride}, v7")
    a("s_waitcnt vmcnt(0)")
    for j in range(4): a(f"v_lshl_or_b32 v{12+j}, v{25+2*j}, 16, v{24+2*j}")
    a("s_nop 1")
    a("v_mfma_f32_16x16x32_bf16 v[16:19], v[8:11], v[12:15], v[16:19]")
    a("v_add_u32 v3, 64, v3"); a(f"v_add_u32 v5, {32*b_stride}, v5")
    a("s_nop 7")
    a("s_add_u32 s28, s28, 32"); a(f"s_cmp_lt_u32 s28, {K}"); a(f"s_cbranch_scc1 {name}_loop")
    a("s_nop 7")
    a("v_lshlrev_b32 v4, 2, v2"); a("v_add_u32 v4, s23, v4"); a(f"s_mov_b32 s26, {c_stride}"); a("v_mul_lo_u32 v4, v4, s26"); a("v_add_u32 v4, v4, v6")
    a(f"v_add_u32 v4, {c_off}, v4")
    for r in range(4):
        a(f"v_cvt_pk_bf16_f32 v20, v{16+r}, v{16+r}")
        a("buffer_store_short v20, v4, s[16:19], 0 offen")
        a(f"v_add_u32 v4, {c_stride}, v4")
        a("s_nop 1")
    a(f"{name}_end:"); a("s_endpgm")
    return "\n".join(s) + "\n"

QOFF = 0; OOFF = 8 << 20
def attn(name):
    s = []; a = s.append
    a(head(name))
    a("s_cmp_ge_u32 s2, 768"); a(f"s_cbranch_scc1 {name}_end")
    a("s_load_dwordx4 s[4:7], s[0:1], 8")
    a("s_load_dwordx2 s[24:25], s[0:1], 56")
    a(f"s_mov_b32 s20, {-(-(1<<32)//6)}"); a("s_mul_hi_u32 s21, s2, s20"); a("s_mul_i32 s22, s21, 6"); a("s_sub_u32 s22, s2, s22")
    a("s_lshr_b32 s30, s21, 4"); a("s_and_b32 s31, s21, 15")
    a("v_and_b32 v1, 15, v0"); a("v_lshrrev_b32 v2, 4, v0")
    a("s_waitcnt lgkmcnt(0)")
    a(srd(8, 4, 33554432)); a(srd(12, 6, 33554432)); a(srd(16, 24, 16 << 20))
    a("s_lshr_b32 s32, s21, 1"); a("s_lshl_b32 s32, s32, 19")
    a("s_mul_i32 s33, s30, 96"); a("s_lshl_b32 s34, s22, 4"); a("s_add_u32 s33, s33, s34"); a("v_add_u32 v3, s33, v1"); a("v_lshlrev_b32 v3, 13, v3")
    a("s_lshl_b32 s34, s31, 9"); a("v_add_u32 v3, s34, v3")
    a("v_lshlrev_b32 v4, 4, v2"); a("v_add_u32 v5, v3, v4")
    for ks in range(8): a(f"buffer_load_dwordx4 v[{32+4*ks}:{35+4*ks}], v5, s[16:19], 0 offen offset:{64*ks}")
    a("v_lshlrev_b32 v6, 9, v1"); a("v_add_u32 v6, v6, v4")
    a("v_lshlrev_b32 v7, 11, v2"); a("v_lshlrev_b32 v8, 1, v1"); a("v_add_u32 v7, v7, v8")
    for r in range(64, 128): a(f"v_mov_b32 v{r}, 0")
    a("v_mov_b32 v9, 0xff800000")
    a("v_mov_b32 v10, 0")
    a("v_xor_b32 v11, 16, v0"); a("v_lshlrev_b32 v11, 2, v11"); a("v_xor_b32 v12, 32, v0"); a("v_lshlrev_b32 v12, 2, v12")
    a("s_mov_b32 s35, 0x3db8aa3b")
    a("s_mov_b32 s28, 0")
    a(f"{name}_loop:")
    for t in range(2):
        for r in range(4): a(f"v_mov_b32 v{16+4*t+r}, 0")
        a(f"s_add_u32 s36, s32, {t*8192}")
        for ks in range(8): a(f"buffer_load_dwordx4 v[{128+4*ks}:{131+4*ks}], v6, s[8:11], s36 offen offset:{64*ks}")
        a("s_waitcnt vmcnt(0)")
        for ks in range(8): a(f"v_mfma_f32_16x16x32_bf16 v[{16+4*t}:{19+4*t}], v[{128+4*ks}:{131+4*ks}], v[{32+4*ks}:{35+4*ks}], v[{16+4*t}:{19+4*t}]")
        a("s_nop 7")
    a("s_nop 7")
    for r in range(8): a(f"v_mul_f32 v{16+r}, s35, v{16+r}")
    a("v_max_f32 v13, v16, v17")
    for r in range(2, 8): a(f"v_max_f32 v13, v13, v{16+r}")
    a("ds_bpermute_b32 v14, v11, v13"); a("s_waitcnt lgkmcnt(0)"); a("v_max_f32 v13, v13, v14")
    a("ds_bpermute_b32 v14, v12, v13"); a("s_waitcnt lgkmcnt(0)"); a("v_max_f32 v13, v13, v14")
    a("v_max_f32 v13, v13, v9")
    a("v_sub_f32 v14, v9, v13"); a("v_exp_f32 v14, v14"); a("v_mov_b32 v9, v13")
    a("s_nop 0")
    a("v_mul_f32 v10, v10, v14")
    for r in range(64, 128): a(f"v_mul_f32 v{r}, v{r}, v14")
    for r in range(8):
        a(f"v_sub_f32 v{16+r}, v{16+r}, v13"); a(f"v_exp_f32 v{16+r}, v{16+r}"); a("s_nop 0"); a(f"v_add_f32 v10, v10, v{16+r}")
    for r in range(4): a(f"v_cvt_pk_bf16_f32 v{24+r}, v{16+2*r}, v{17+2*r}")
    a("s_add_u32 s36, s32, 8192")
    for half in range(2):
        for dt in range(8*half, 8*half+8):
            base = 128 + 4*(dt % 8)
            for j in range(8):
                so = "s32" if j < 4 else "s36"
                a(f"buffer_load_ushort v{160 + 8*(dt%4) + j}, v7, s[12:15], {so} offen offset:{(j%4)*512 + dt*32}")
            if dt % 4 == 3:
                a("s_waitcnt vmcnt(0)")
                for d2 in range(dt-3, dt+1):
                    for j in range(4): a(f"v_lshl_or_b32 v{128 + 4*(d2%8) + j}, v{161 + 8*(d2%4) + 2*j}, 16, v{160 + 8*(d2%4) + 2*j}")
        a("s_nop 1")
        for dt in range(8*half, 8*half+8):
            base = 128 + 4*(dt % 8)
            a(f"v_mfma_f32_16x16x32_bf16 v[{64+4*dt}:{67+4*dt}], v[{base}:{base+3}], v[24:27], v[{64+4*dt}:{67+4*dt}]")
        a("s_nop 7")
    a("s_nop 7")
    a("s_add_u32 s32, s32, 16384")
    a("s_add_u32 s28, s28, 32"); a("s_cmp_lt_u32 s28, 1024"); a(f"s_cbranch_scc1 {name}_loop")
    a("ds_bpermute_b32 v14, v11, v10"); a("s_waitcnt lgkmcnt(0)"); a("v_add_f32 v10, v10, v14")
    a("ds_bpermute_b32 v14, v12, v10"); a("s_waitcnt lgkmcnt(0)"); a("v_add_f32 v10, v10, v14")
    a("v_rcp_f32 v10, v10"); a("s_nop 0")
    a("v_lshlrev_b32 v4, 3, v2"); a("v_add_u32 v5, v3, v4"); a(f"v_add_u32 v5, {OOFF}, v5")
    for dt in range(16):
        for r in range(4): a(f"v_mul_f32 v{64+4*dt+r}, v{64+4*dt+r}, v10")
        a(f"v_cvt_pk_bf16_f32 v{128+2*dt}, v{64+4*dt}, v{65+4*dt}"); a(f"v_cvt_pk_bf16_f32 v{129+2*dt}, v{66+4*dt}, v{67+4*dt}")
        a(f"buffer_store_dwordx2 v[{128+2*dt}:{129+2*dt}], v5, s[16:19], 0 offen offset:{dt*32}")
    a(f"{name}_end:"); a("s_endpgm")
    return "\n".join(s) + "\n"

def probe(name, aux, npieces=64):
    s = []; a = s.append
    a(head(name))
    a("s_cmp_ge_u32 s2, 256"); a(f"s_cbranch_scc1 {name}_end")
    if npieces:
        a("s_load_dwordx4 s[4:7], s[0:1], 8")
        a("v_lshrrev_b32 v1, 6, v0"); a("s_nop 0"); a("v_readfirstlane_b32 s16, v1")
        a("v_and_b32 v2, 63, v0"); a("v_lshlrev_b32 v2, 4, v2")
        a("s_waitcnt lgkmcnt(0)")
        a(srd(8, 4, 33554432)); a(srd(12, 6, 33554432))
        a("s_lshl_b32 s17, s2, 17"); a("s_lshl_b32 s19, s16, 10"); a("s_add_u32 s17, s17, s19")
        a("s_mul_i32 s25, s16, 32768")
        for i in range(npieces):
            if i >= 32: a("s_waitcnt vmcnt(31)")
            a(f"s_add_u32 m0, s25, {(i%32)*1024}")
            a(f"s_add_u32 s26, s17, {(i%32)*4096}")
            a(f"buffer_load_dwordx4 v2, s[{8 if i < 32 else 12}:{11 if i < 32 else 15}], s26 offen {aux} lds")
        a("s_waitcnt vmcnt(0)")
    a(f"{name}_end:"); a("s_endpgm")
    return "\n".join(s) + "\n"

def build(probes):
    hdr = []; body = []; kds = []
    for nm, aux, n in probes:
        hdr.append(f"; @launch kernel={nm} grid=(256,1,1) block=(256,1,1) lds=131072")
    seen = set()
    for nm, aux, n in probes:
        if nm in seen: continue
        seen.add(nm)
        body.append(probe(nm, aux, n)); kds.append(kd(nm, 16, 48, 16))
    hdr.append("; @launch kernel=qproj_kernel grid=(12288,1,1) block=(64,1,1) lds=0")
    hdr.append(f"; @launch kernel={NAME}_kernel grid=(768,1,1) block=(64,1,1) lds=0")
    hdr.append("; @launch kernel=oproj_kernel grid=(1344,1,1) block=(64,1,1) lds=0")
    body.append(gemm("qproj_kernel", 0, 0, 688128, 896, 3, 3670016, 8192, 7, QOFF, 16 << 20, 8192, 256, 12288, 448)); kds.append(kd("qproj_kernel", 32, 48, 32))
    body.append(attn(NAME + "_kernel")); kds.append(kd(NAME + "_kernel", 192, 48, 192))
    body.append(gemm("oproj_kernel", 7, OOFF, 16 << 20, 8192, 4, 3670016, 896, 5, 0, 688128, 896, 28, 1344, 4096)); kds.append(kd("oproj_kernel", 32, 48, 32))
    out = "\n".join(hdr) + '\n.amdgcn_target "amdgcn-amd-amdhsa--gfx950"\n.text\n' + "".join(body)
    out += '.section .rodata,"a"\n' + "".join(".p2align 6\n" + k for k in kds)
    return out

if __name__ == "__main__":
    open("cdna_kernels/" + NAME + ".s", "w").write(build([]))
    import os
    os.makedirs("var", exist_ok=True)
    open("s_base.s", "w").write(build([]))
    open("s_empty.s", "w").write(build([("empty_kernel", "", 0)]))
    open("s_empty4.s", "w").write(build([("empty_kernel", "", 0)] * 4))
    open("s_nt.s", "w").write(build([("pnt_kernel", "nt", 64)]))
    open("s_def.s", "w").write(build([("pdef_kernel", "", 64)]))
```

```python
from simple import *
AMP = 20
def amplify(a, name):
    a("s_memrealtime s[22:23]"); a("s_waitcnt lgkmcnt(0)")
    a("s_sub_u32 s24, s22, s20"); a(f"s_mul_i32 s24, s24, {AMP}")
    a("s_min_u32 s24, s24, 100000")
    a(f"{name}_spin:")
    a("s_memrealtime s[40:41]"); a("s_waitcnt lgkmcnt(0)")
    a("s_sub_u32 s42, s40, s22"); a("s_cmp_lt_u32 s42, s24"); a(f"s_cbranch_scc1 {name}_spin")

def stream_probe(name, aux, share=1, depth=32, src="kv"):
    s = []; a = s.append
    a(head(name))
    a("s_cmp_ge_u32 s2, 256"); a(f"s_cbranch_scc1 {name}_end")
    a("s_memrealtime s[20:21]")
    if src == "kv":
        a("s_load_dwordx4 s[4:7], s[0:1], 8")
    else:
        a("s_load_dwordx2 s[4:5], s[0:1], 56")
    a("v_lshrrev_b32 v1, 6, v0"); a("s_nop 0"); a("v_readfirstlane_b32 s16, v1")
    a("v_and_b32 v2, 63, v0"); a("v_lshlrev_b32 v2, 4, v2")
    a("s_waitcnt lgkmcnt(0)")
    if src != "kv":
        off = {"ws_lo": 32 << 20, "ws_hi": 192 << 20}[src]
        a(f"s_add_u32 s4, s4, {off}"); a("s_addc_u32 s5, s5, 0")
        a(f"s_add_u32 s6, s4, {32<<20}"); a("s_addc_u32 s7, s5, 0")
    a(srd(8, 4, 33554432)); a(srd(12, 6, 33554432))
    sh = {1:0, 2:1, 4:2}[share]
    a("s_and_b32 s17, s2, 7"); a(f"s_lshr_b32 s18, s2, {3+sh}"); a("s_lshl_b32 s18, s18, 3"); a("s_add_u32 s17, s17, s18")
    a(f"s_lshl_b32 s17, s17, {17+sh}"); a("s_lshl_b32 s19, s16, 10"); a("s_add_u32 s17, s17, s19")
    a("s_mul_i32 s25, s16, 32768")
    n = 32 * share
    for i in range(2*n):
        if i >= depth: a(f"s_waitcnt vmcnt({depth-1})")
        a(f"s_add_u32 m0, s25, {(i%depth)*1024}")
        a(f"s_add_u32 s26, s17, {(i%n)*4096}")
        a(f"buffer_load_dwordx4 v2, s[{8 if i < n else 12}:{11 if i < n else 15}], s26 offen {aux} lds")
    a("s_waitcnt vmcnt(0)")
    amplify(a, name)
    a(f"{name}_end:"); a("s_endpgm")
    return "\n".join(s) + "\n"

def build2(pname, ptext, vg=16):
    base = build([])
    hdr = f"; @launch kernel={pname} grid=(256,1,1) block=(256,1,1) lds=131072\n"
    base = base.replace(".text\n", ".text\n" + ptext, 1)
    base += ".p2align 6\n" + kd(pname, vg, 64, vg)
    return hdr + base

if __name__ == "__main__":
    for nm, aux, sh, src in [("def1", "", 1, "kv"), ("nt1", "nt", 1, "kv"), ("def2", "", 2, "kv"), ("nt2", "nt", 2, "kv"), ("def4", "", 4, "kv"), ("nt4", "nt", 4, "kv"),
                             ("wslo", "", 1, "ws_lo"), ("wshi", "", 1, "ws_hi"), ("wslont", "nt", 1, "ws_lo"), ("wshint", "nt", 1, "ws_hi")]:
        open(f"p_{nm}.s", "w").write(build2("probe_kernel", stream_probe("probe_kernel", aux, sh, 32, src)))
```

```python
import re

def regs(op):
    op = op.strip()
    if op.startswith("-"): op = op[1:]
    m = re.fullmatch(r"([vas])(\d+)", op)
    if m: return [(m.group(1), int(m.group(2)))]
    m = re.fullmatch(r"([vas])\[(\d+):(\d+)\]", op)
    if m: return [(m.group(1), i) for i in range(int(m.group(2)), int(m.group(3)) + 1)]
    if op == "vcc": return [("s", "vcc")]
    if op == "m0": return [("s", "m0")]
    if op == "exec": return [("s", "exec")]
    return []

def R(f, base, n=1):
    return f"{f}{base}" if n == 1 else f"{f}[{base}:{base+n-1}]"

TRANS = ("v_exp_f32", "v_log_f32", "v_rcp_f32", "v_rsq_f32", "v_sqrt_f32")

class I:
    __slots__ = ("text", "kind", "rd", "wr", "tag", "srcc", "states", "wide")
    def __init__(self, text, kind, rd=(), wr=(), tag=None, srcc=(), states=1, wide=False):
        self.text, self.kind, self.rd, self.wr, self.tag = text, kind, set(rd), set(wr), tag
        self.srcc, self.states, self.wide = set(srcc), states, wide

def mfma(d, a, b, c):
    return I(f"v_mfma_f32_16x16x32_bf16 {d}, {a}, {b}, {c}", "mfma", regs(a) + regs(b) + regs(c), regs(d), srcc=regs(c))
def valu(op, dst, *src, extra_rd=(), extra_wr=()):
    rd = [r for s in src for r in regs(s)] + list(extra_rd)
    wr = regs(dst) + list(extra_wr)
    kind = "trans" if op in TRANS else "valu"
    if op.startswith("v_permlane"):
        kind = "perm"; rd += regs(dst); wr += regs(src[0])
    if op in ("v_fmac_f32", "v_writelane_b32"): rd += regs(dst)
    if op in ("v_readfirstlane_b32", "v_readlane_b32"): kind = "rdlane"
    return I(f"{op} {dst}, " + ", ".join(src), kind, rd, wr)
def salu(op, *ops):
    if op.startswith("s_cmp") or op.startswith("s_bitcmp"):
        return I(f"{op} " + ", ".join(ops), "salu", [r for s in ops for r in regs(s)], [])
    return I(f"{op} " + ", ".join(ops), "salu", [r for s in ops[1:] for r in regs(s)], regs(ops[0]))
def ds_read(op, d, addr, off=0):
    assert 0 <= off < 65536, off
    return I(f"{op} {d}, {addr}" + (f" offset:{off}" if off else ""), "dsr", regs(addr), regs(d))
def ds_write(op, addr, data, off=0):
    assert 0 <= off < 65536, off
    return I(f"{op} {addr}, {data}" + (f" offset:{off}" if off else ""), "dsw", regs(addr) + regs(data), [])
def dma(voff, srd, soff, imm=0, aux="", tag=None):
    assert 0 <= imm < 4096
    t = f"buffer_load_dwordx4 {voff}, {srd}, {soff} offen" + (f" offset:{imm}" if imm else "") + (f" {aux}" if aux else "") + " lds"
    return I(t, "dma", regs(voff) + regs(srd) + regs(soff) + regs("m0"), [], tag=tag)
def vload(op, d, voff, srd, soff, imm=0, aux="", tag=None):
    assert 0 <= imm < 4096
    t = f"{op} {d}, {voff}, {srd}, {soff} offen" + (f" offset:{imm}" if imm else "") + (f" {aux}" if aux else "")
    return I(t, "vld", regs(voff) + regs(srd) + regs(soff), regs(d), tag=tag)
def vstore(op, d, voff, srd, soff, imm=0, aux="", tag=None):
    assert 0 <= imm < 4096
    t = f"{op} {d}, {voff}, {srd}, {soff} offen" + (f" offset:{imm}" if imm else "") + (f" {aux}" if aux else "")
    i = I(t, "vst", regs(d) + regs(voff) + regs(srd) + regs(soff), [], tag=tag, wide=len(regs(d)) > 2)
    i.srcc = set(regs(d))
    return i
def raw(text, kind="raw", rd=(), wr=(), states=1):
    return I(text, kind, rd, wr, states=states)
def wait_vm(tag):   return I("", "waitvm", tag=tag)
def wait_vm0():     return I("", "waitvm", tag="*")
def wait_lgkm0():   return I("", "waitlgkm")
def wait_dsw():     return I("", "waitdsw")
def wait_dsr():     return I("", "waitdsr")
def barrier():      return I("s_barrier", "salu")
def label(name):    return I(f"{name}:", "label", states=0)
def comment(t):     return I(f"; {t}", "label", states=0)
def nop(n):         return I(f"s_nop {n}", "nop", states=n + 1)

VALU_KINDS = ("valu", "trans", "perm", "rdlane")
VM_KINDS = ("dma", "vld", "vst")

def need_states(p, c):
    n = 0
    if p.kind == "mfma":
        if c.kind == "mfma":
            ab = c.rd - c.srcc
            if p.wr & ab: n = max(n, 8)
            if p.wr & c.srcc and p.wr != c.srcc: n = max(n, 6)
            if p.wr & c.wr and p.wr != c.wr: n = max(n, 6)
            if p.wr == c.wr and p.wr != c.srcc: n = max(n, 6)
        elif c.kind in VALU_KINDS:
            if p.wr & (c.rd | c.wr): n = max(n, 8)
            if p.srcc & c.wr: n = max(n, 3)
        elif c.kind in ("dsr", "dsw") + VM_KINDS:
            if p.wr & (c.rd | c.wr): n = max(n, 8)
    if p.kind in VALU_KINDS:
        vw = {r for r in p.wr if r[0] != "s"}; sw = {r for r in p.wr if r[0] == "s"}
        if c.kind == "mfma" and vw & c.rd: n = max(n, 2)
        if c.kind == "perm" and vw & c.rd: n = max(n, 2)
        if c.kind == "rdlane" and vw & c.rd: n = max(n, 1)
        if p.kind == "trans" and c.kind in VALU_KINDS + ("dsw", "vst") and vw & c.rd: n = max(n, 1)
        if sw & c.rd:
            if c.kind in VM_KINDS: n = max(n, 5)
            elif c.kind in VALU_KINDS: n = max(n, 4)
            elif c.kind in ("salu", "raw"): n = max(n, 1)
    if p.kind == "vst" and p.wide and p.srcc & c.wr: n = max(n, 2)
    if p.kind == "salu" and ("s", "m0") in p.wr and c.kind == "dma": n = max(n, 1)
    return n

class Stream:
    def __init__(self):
        self.out = []; self.hist = []
        self.lg = []; self.vm = []
        self.nops = 0; self.count = 0
    def _put(self, ins):
        self.out.append(ins.text if ins.kind == "label" else "  " + ins.text)
        if ins.states:
            self.hist.append(ins); self.hist = self.hist[-24:]; self.count += 1
    def _wait(self, vm=None, lg=None):
        parts = []
        if vm is not None:
            vm = min(vm, 63); parts.append(f"vmcnt({vm})"); self.vm = self.vm[len(self.vm) - vm:] if vm else []
        if lg is not None:
            lg = min(lg, 15); parts.append(f"lgkmcnt({lg})"); self.lg = self.lg[len(self.lg) - lg:] if lg else []
        if parts: self._put(I("s_waitcnt " + " ".join(parts), "wait"))
    def emit(self, ins):
        if isinstance(ins, (list, tuple)):
            for i in ins: self.emit(i)
            return
        k = ins.kind
        if k == "waitvm":
            if ins.tag == "*": self._wait(vm=0); return
            idx = [j for j, o in enumerate(self.vm) if o.tag == ins.tag]
            if idx: self._wait(vm=len(self.vm) - 1 - idx[-1])
            return
        if k == "waitlgkm": self._wait(lg=0); return
        if k in ("waitdsw", "waitdsr"):
            idx = [j for j, o in enumerate(self.lg) if o.kind == k[4:]]
            if idx: self._wait(lg=len(self.lg) - 1 - idx[-1])
            return
        touched = ins.rd | ins.wr
        vm = lg = None
        idx = [j for j, o in enumerate(self.lg) if o.wr & touched]
        if idx: lg = len(self.lg) - 1 - idx[-1]
        idx = [j for j, o in enumerate(self.vm) if o.wr & touched]
        if idx: vm = len(self.vm) - 1 - idx[-1]
        self._wait(vm, lg)
        if k in VM_KINDS and len(self.vm) >= 62: self._wait(vm=61)
        dist = 0; need = 0
        for p in reversed(self.hist):
            n = need_states(p, ins)
            if n > dist: need = max(need, n - dist)
            dist += p.states
            if dist >= 12: break
        if need:
            self._put(nop(need - 1)); self.nops += 1
        self._put(ins)
        if k in ("dsr", "dsw"): self.lg.append(ins)
        if k in VM_KINDS: self.vm.append(ins)
    def text(self):
        return "\n".join(self.out) + "\n"

def weave(main, fill):
    out = []
    fill = sorted(enumerate(fill), key=lambda e: (e[1][0], e[0]))
    j = 0
    for i in range(len(main) + 1):
        while j < len(fill) and fill[j][1][0] <= i:
            out.append(fill[j][1][1]); j += 1
        if i < len(main): out.append(main[i])
    while j < len(fill):
        out.append(fill[j][1][1]); j += 1
    return out

def spread(items, lo, hi):
    n = len(items)
    return [(lo + (hi - lo) * i // max(n, 1), it) for i, it in enumerate(items)]
```

```python
import sys
from asmlib import *

NAME = "standalone__gqa_block_cached__near_ridge"
KN = NAME + "_kernel"

RK, RV, SH = 0, 65536, 131072
LA = SH + 24576
QOV = SH + 16384
LDS_BYTES = 163840
WS_FLAG1, WS_CNT2, WS_STAT, WS_X1, WS_X2, WS_DIAG = 0, 0x20000, 0x40000, 0x100000, 0x800000, 0x1400000
WS_BYTES = 0x1800000
SLAB2 = 43008
def xslot(i):
    return i * 12288 if i < 5 else (12288 if i == 5 else 0)

sX, sK, sV, sWq, sWo, sOut, sWs, sDbg = (f"s[{a}:{a+3}]" for a in (8, 12, 16, 20, 24, 28, 32, 36))
sWsB = "s[54:55]"
s_w, s_hkv, s_b, s_hh, s_s, s_h = "s56", "s57", "s58", "s59", "s60", "s61"
s_kb, s_vb, s_rk, s_rv, s_xl = "s62", "s63", "s64", "s65", "s66"
s_xo = [f"s{67+i}" for i in range(7)]
s_wo = [f"s{74+i}" for i in range(7)]
s_t0, s_t1, s_wob = "s81", "s82", "s83"
s_x1o, s_x1p, s_sto, s_stp, s_flo, s_flp, s_cnt, s_x2o, s_x2r = (f"s{84+i}" for i in range(9))
s_pass, s_c, s_t2, s_t3 = "s93", "s94", "s95", "s3"
s_spin = "s4"; s_pv = "s5"
vLane = "v1"
vKd = [f"v{2+i}" for i in range(8)]
vVd = [f"v{10+i}" for i in range(4)]
vWd = [f"v{14+i}" for i in range(4)]
vXd = [f"v{18+i}" for i in range(3)]
vKr = [f"v{21+i}" for i in range(4)]
vTr = [f"v{25+i}" for i in range(4)]
vXr = ["v29", "v30"]
vQw, vQr, vPw, vPr, vLin, vLw, vLr, vSt, vGo, vStamp, vQw2, vOw = (f"v{31+i}" for i in range(12))
vT = [f"v{43+i}" for i in range(5)]
L0, M0_, LT0 = 48, 54, 84
S0, PF0, O0 = 60, 108, 156
vTr2 = [f"v{92+i}" for i in range(4)]
vWo = [f"v{96+i}" for i in range(4)]
vRed, vOut = "v100", "v101"
def vl(q): return f"v{L0+q}"
def vm(q): return f"v{M0_+q}"
def S(q, base=S0): return base + 4*q
def O(u, q): return O0 + (q*4 + u)*4
def PF(ks, q): return PF0 + (ks*6 + q)*4
def aQ(ks, q): return (ks*6 + q)*4
def aK(ks): return 192 + 4*ks
def aV(ks, u): return 224 + (ks*4 + u)*4
def aW(col, ks, u): return col*128 + (ks*4 + u)*4
v4 = lambda n: R("v", n, 4)
a4 = lambda n: R("a", n, 4)

class Gen:
    def __init__(self, diag=False, kvpol="nt", force_fallback=False, dump=None, prefetch=True):
        self.st = Stream(); self.diag = diag; self.kvpol = kvpol; self.ns = 0
        self.force_fallback = force_fallback; self.dump = dump; self.prefetch = prefetch
    def e(self, x): self.st.emit(x)
    def stamp(self):
        if not self.diag: return []
        i = self.ns; self.ns += 1
        return [raw("s_memrealtime s[96:97]"), wait_lgkm0(), valu("v_writelane_b32", vStamp, "s96", str(i))]

    def dma_x(self, i):
        base = (RK if i < 5 else SH) + xslot(i)
        return [salu("s_add_u32", "m0", s_xl, str(base))] + [dma(vXd[k], sX, s_xo[i], k*1024, tag=f"X{i}") for k in range(3)]
    def dma_wq(self, j):
        o = [salu("s_add_u32", "m0", s_rv, str((j & 3)*4096))]
        so = s_wo[j >> 1]
        if j & 1:
            o.append(salu("s_add_u32", s_t0, so, str(32*8192))); so = s_t0
        return o + [dma(vWd[k], sWq, so, k*1024, tag=f"W{j}") for k in range(4)]
    def dma_k(self, t):
        o = []
        for g in range(2):
            grp = [salu("s_add_u32", "m0", s_rk, str((t & 1)*8192 + g*4096))]
            if g == 0: grp.append(salu("s_add_u32", s_t0, s_kb, str(t*32768)))
            grp += [dma(vKd[4*g + k], sK, s_t0, k*1024, self.kvpol, tag=f"K{t}") for k in range(4)]
            o += grp
        return o
    def dma_v(self, t):
        o = []
        for g in range(2):
            o += [salu("s_add_u32", "m0", s_rv, str(((t + 1) & 1)*8192 + g*4096)), salu("s_add_u32", s_t0, s_vb, str(t*32768 + g*16384))]
            o += [dma(vVd[k], sV, s_t0, k*1024, self.kvpol, tag=f"V{t}.{g}") for k in range(4)]
        return o
    def wo_lds(self, ks):
        if ks < 4: return s_rk, ks*4096, vTr2
        return s_rv, ((ks - 4) ^ 2)*4096, vTr
    def dma_wo(self, col, ks):
        b, off, _ = self.wo_lds(ks)
        return [salu("s_add_u32", "m0", b, str(off)), salu("s_add_u32", s_t0, s_wob, str(ks*32*896 + col*128))] + \
               [dma(vWo[k], sWo, s_t0, k*1024, tag=f"O{col}.{ks}") for k in range(4)]
    def rd_tr(self, dst, addr, off):
        return [ds_read("ds_read_b64_tr_b16", R("a", dst, 2), addr, off), ds_read("ds_read_b64_tr_b16", R("a", dst + 2, 2), addr, off + 2048)]
    def rd_qp(self, j):
        s = (j & 1)*40
        o = []
        for u in range(4): o += self.rd_tr(s + 4*u, vTr[u], (j & 3)*4096)
        for q in range(6): o.append(ds_read("ds_read_b128", a4(s + 16 + 4*q), vXr[j & 1], xslot(j >> 1) + q*2048))
        return o
    def rd_k(self, t):
        return [ds_read("ds_read_b128", a4(aK(ks)), vKr[ks & 3], (t & 1)*8192 + (ks >> 2)*256) for ks in range(8)]
    def rd_v(self, t, ks):
        o = []
        for u in range(4): o += self.rd_tr(aV(ks, u), vTr[u], ((t + 1) & 1)*8192 + ks*4096)
        return o
    def rd_p(self, t, ks, qs=range(6)):
        return [ds_read("ds_read_b128", v4(PF(ks, q)), vPr, (t & 1)*12288 + (ks*6 + q)*1024) for q in qs]
    def rd_wo(self, col, ks):
        _, off, ar = self.wo_lds(ks)
        o = []
        for u in range(4): o += self.rd_tr(aW(col, ks, u), ar[u], off)
        return o
    def softmax(self, t, q, base):
        s = S(q, base); o = []
        for r in range(4): o.append(valu("v_fma_f32", f"v{s+r}", f"v{s+r}", s_c, vm(q)))
        for r in range(4): o.append(valu("v_exp_f32", f"v{s+r}", f"v{s+r}"))
        if t == 0:
            o.append(valu("v_add_f32", vl(q), f"v{s}", f"v{s+1}"))
        else:
            o.append(valu("v_add_f32", vl(q), vl(q), f"v{s}")); o.append(valu("v_add_f32", vl(q), vl(q), f"v{s+1}"))
        o.append(valu("v_cvt_pk_bf16_f32", f"v{s}", f"v{s}", f"v{s+1}"))
        o.append(valu("v_add_f32", vl(q), vl(q), f"v{s+2}")); o.append(valu("v_add_f32", vl(q), vl(q), f"v{s+3}"))
        o.append(valu("v_cvt_pk_bf16_f32", f"v{s+1}", f"v{s+2}", f"v{s+3}"))
        o.append(ds_write("ds_write_b64", vPw, R("v", s, 2), (t & 1)*12288 + q*1024))
        return o
    def mf_a(self, base):
        return [mfma(v4(S(q, base)), a4(aK(ks)), a4(aQ(ks, q)), "0" if ks == 0 else v4(S(q, base)))
                for half in range(2) for ks in range(8) for q in range(3*half, 3*half + 3)]
    def mf_b(self, t):
        def m(ks, u, q): return mfma(v4(O(u, q)), a4(aV(ks, u)), v4(PF(ks, q)), "0" if (t == 0 and ks == 0) else v4(O(u, q)))
        if t < 7: return [m(ks, u, q) for ks in range(2) for u in range(4) for q in range(6)]
        return [m(ks, u, q) for qs in (range(3, 6), range(3)) for ks in range(2) for u in range(4) for q in qs]

    def setup(self):
        e = self.e
        e(salu("s_cmp_ge_u32", "s2", "256")); e(raw("s_cbranch_scc1 L_end"))
        e(raw("s_load_dwordx16 s[40:55], s[0:1], 0"))
        if self.diag: e(raw("s_memrealtime s[98:99]"))
        e(valu("v_lshrrev_b32", vT[0], "6", "v0")); e(valu("v_and_b32", vLane, "63", "v0"))
        e(valu("v_readfirstlane_b32", s_w, vT[0]))
        e(salu("s_and_b32", s_hkv, "s2", "7")); e(salu("s_lshr_b32", s_t0, "s2", "3"))
        e(salu("s_and_b32", s_hh, s_t0, "1")); e(salu("s_bfe_u32", s_s, s_t0, "0x10001")); e(salu("s_lshr_b32", s_b, s_t0, "2"))
        e(salu("s_lshl_b32", s_h, s_hkv, "1")); e(salu("s_add_u32", s_h, s_h, s_hh))
        e(salu("s_lshl_b32", s_rk, s_w, "14")); e(salu("s_add_u32", s_rv, s_rk, str(RV))); e(salu("s_mul_i32", s_xl, s_w, "3072"))
        T0, T1, T2, T3, T4 = vT
        e(valu("v_lshrrev_b32", T0, "3", vLane)); e(valu("v_and_b32", T1, "7", vLane))
        e(salu("s_and_b32", s_t1, s_t0, "3")); e(salu("s_lshl_b32", s_t1, s_t1, "1")); e(salu("s_add_u32", s_t1, s_t1, s_b))
        e(salu("s_cmp_ge_u32", s_t1, "7")); e(salu("s_cselect_b32", s_t2, "7", "0")); e(salu("s_sub_u32", s_t1, s_t1, s_t2))
        e(salu("s_mul_i32", s_t2, s_b, "86016"))
        e(salu("s_lshl_b32", s_t3, s_h, "9")); e(salu("s_lshl_b32", s_t0, s_w, "7")); e(salu("s_add_u32", s_t3, s_t3, s_t0))
        for i in range(7):
            e(salu("s_lshl_b32", s_xo[i], s_t1, "7")); e(salu("s_add_u32", s_xo[i], s_xo[i], s_t2))
            e(salu("s_lshl_b32", s_wo[i], s_t1, "19")); e(salu("s_add_u32", s_wo[i], s_wo[i], s_t3))
            if i < 6:
                e(salu("s_add_u32", s_t1, s_t1, "1")); e(salu("s_cmp_ge_u32", s_t1, "7")); e(salu("s_cselect_b32", s_t1, "0", s_t1))
        e(valu("v_lshrrev_b32", T2, "4", vLane))
        for i in range(3):
            e(salu("s_mul_i32", s_t0, s_w, "3")); e(salu("s_add_u32", s_t0, s_t0, str(i)))
            e(salu("s_and_b32", s_t1, s_t0, "1")); e(salu("s_lshl_b32", s_t1, s_t1, "2"))
            e(salu("s_mul_i32", s_t2, s_s, "6")); e(salu("s_add_u32", s_t0, s_t0, s_t2))
            e(salu("s_cmp_ge_u32", s_t0, "12")); e(salu("s_cselect_b32", s_t2, "12", "0")); e(salu("s_sub_u32", s_t0, s_t0, s_t2))
            e(salu("s_mul_i32", s_t0, s_t0, "7168")); e(salu("s_sub_u32", s_t0, s_t0, str(i*1024)))
            e(valu("v_add_u32", T3, s_t1, T2)); e(valu("v_xor_b32", T3, T3, T1)); e(valu("v_lshlrev_b32", T3, "4", T3))
            e(valu("v_mul_u32_u24", T4, "896", T0)); e(valu("v_add3_u32", vXd[i], T3, T4, s_t0))
        e(valu("v_lshlrev_b32", T3, "1", T2)); e(valu("v_xor_b32", T3, T3, T1)); e(valu("v_lshlrev_b32", T3, "4", T3))
        e(valu("v_lshrrev_b32", T4, "2", T0)); e(valu("v_lshlrev_b32", T4, "3", T4)); e(valu("v_and_b32", T1, "3", T0)); e(valu("v_add_u32", T4, T4, T1))
        e(valu("v_lshl_add_u32", T4, T4, "13", T3))
        for i in range(4):
            e(valu("v_add_u32", vWd[i], str((16*(i & 1) + 4*(i >> 1))*8192 - i*1024), T4))
        e(wait_lgkm0())
        for d, p, n in ((8, 40, 688128), (20, 46, 3670016), (12, 42, 33554432), (16, 44, 33554432), (24, 48, 3670016), (28, 50, 688128), (32, 54, WS_BYTES), (36, 52, 256)):
            e(salu("s_mov_b32", f"s{d}", f"s{p}")); e(salu("s_mov_b32", f"s{d+1}", f"s{p+1}"))
            e(salu("s_mov_b32", f"s{d+2}", str(n))); e(salu("s_mov_b32", f"s{d+3}", "0x20000"))
            if d == 20:
                e(self.dma_x(0)); e(self.dma_wq(0)); e(self.dma_wq(1))
        e(salu("s_lshl_b32", s_t0, s_b, "14")); e(salu("s_lshl_b32", s_t1, s_w, "13")); e(salu("s_add_u32", s_t0, s_t0, s_t1))
        e(salu("s_lshl_b32", s_t1, s_b, "8")); e(salu("s_add_u32", s_t1, s_t1, str(WS_CNT2)))
        e(salu("s_cmp_eq_u32", s_w, "2")); e(salu("s_cselect_b32", s_t0, s_t1, s_t0)); e(salu("s_cselect_b32", s_t1, "2", "7"))
        e(salu("s_cmp_eq_u32", s_w, "3")); e(salu("s_cselect_b32", s_t0, str(WS_BYTES), s_t0))
        e(salu("s_and_b32", s_t2, "s2", "31")); e(salu("s_cmp_lg_u32", s_t2, "0")); e(salu("s_cselect_b32", s_t0, str(WS_BYTES), s_t0))
        e(valu("v_lshlrev_b32", T1, s_t1, vLane)); e(valu("v_add_u32", T1, s_t0, T1)); e(valu("v_mov_b32", vGo, "0"))
        e(vstore("buffer_store_dword", vGo, T1, sWs, "0", aux="sc1", tag="Z"))
        e(self.dma_x(1)); e(self.dma_wq(2)); e(self.dma_wq(3))
        if self.prefetch:
            e(raw("s_getpc_b64 s[6:7]", wr=[("s", 6), ("s", 7)]))
            e(salu("s_lshr_b32", s_t0, "s2", "3")); e(salu("s_lshl_b32", s_t0, s_t0, "2")); e(salu("s_add_u32", s_t0, s_t0, s_w)); e(salu("s_mul_i32", s_t0, s_t0, str(self.PFL*128)))
            e(valu("v_lshl_add_u32", T1, vLane, "7", s_t0))
            e(salu("s_mov_b64", "exec", str((1 << self.PFL) - 1)))
            e(I(f"global_load_dword {vT[4]}, {T1}, s[6:7]", "vld", regs(T1), regs(vT[4])))
            e(salu("s_mov_b64", "exec", "-1"))
        for i in range(4):
            e(valu("v_lshl_add_u32", vVd[i], T0, "9", T3));
            if i: e(valu("v_add_u32", vVd[i], str(i*3072), vVd[i]))
            e(valu("v_mul_u32_u24", vWo[i], "896", T0)); e(valu("v_add_u32", vWo[i], vWo[i], T3))
            if i: e(valu("v_add_u32", vWo[i], str(i*(7168 - 1024)), vWo[i]))
        e(valu("v_lshrrev_b32", T0, "5", vLane)); e(valu("v_and_b32", T1, "31", vLane)); e(valu("v_xor_b32", T1, T1, T0))
        e(valu("v_lshlrev_b32", T1, "4", T1)); e(valu("v_lshl_add_u32", T1, T0, "9", T1))
        for i in range(8):
            e(valu("v_xor_b32", vKd[i], str(i*32), T1))
            if i >= 4: e(valu("v_add_u32", vKd[i], "4096", vKd[i]))
        e(valu("v_and_b32", T0, "15", vLane))
        e(valu("v_xor_b32", T1, T0, T2)); e(valu("v_lshlrev_b32", T1, "4", T1)); e(valu("v_lshl_add_u32", T1, T0, "9", T1))
        for i in range(4):
            e(valu("v_xor_b32", vKr[i], str(i*64), T1)); e(valu("v_add_u32", vKr[i], s_rk, vKr[i]))
        e(valu("v_lshrrev_b32", T1, "1", T0)); e(valu("v_xor_b32", T1, T1, T2)); e(valu("v_lshlrev_b32", T1, "4", T1)); e(valu("v_lshl_add_u32", vXr[0], T0, "7", T1))
        e(valu("v_xor_b32", vXr[1], "64", vXr[0]))
        e(valu("v_lshrrev_b32", T1, "2", vLane)); e(valu("v_lshlrev_b32", T1, "7", T1))
        e(valu("v_bfe_u32", T3, vLane, "3", "2")); e(valu("v_lshl_add_u32", T1, T3, "5", T1))
        e(valu("v_and_b32", T3, "3", vLane)); e(valu("v_lshl_add_u32", T1, T3, "3", T1))
        for i in range(4):
            e(valu("v_xor_b32", T3, str(i*32), T1)); e(valu("v_add_u32", vTr[i], s_rv, T3)); e(valu("v_add_u32", vTr2[i], s_rk, T3))
        e(valu("v_lshlrev_b32", vLin, "4", vLane))
        e(valu("v_add_u32", vQr, str(RV), vLin)); e(valu("v_add_u32", vPr, str(SH), vLin))
        e(valu("v_lshrrev_b32", T1, "1", T2)); e(valu("v_lshl_add_u32", T1, T1, "4", T0)); e(valu("v_lshlrev_b32", T1, "4", T1))
        e(valu("v_and_b32", T3, "1", T2)); e(valu("v_lshl_add_u32", T1, T3, "3", T1))
        e(valu("v_add_u32", vQw, s_rv, T1))
        e(salu("s_lshl_b32", s_t0, s_w, "12")); e(salu("s_add_u32", s_t0, s_t0, str(QOV))); e(valu("v_add_u32", vQw2, s_t0, T1))
        e(salu("s_and_b32", s_t0, s_w, "1")); e(salu("s_lshl_b32", s_t0, s_t0, "3")); e(salu("s_lshr_b32", s_t1, s_w, "1")); e(salu("s_mul_i32", s_t1, s_t1, "6144"))
        e(salu("s_add_u32", s_t0, s_t0, s_t1)); e(valu("v_add_u32", vPw, s_t0, vPr))
        e(salu("s_mul_i32", s_t0, s_w, "6144")); e(valu("v_add_u32", vOw, s_t0, vPr))
        e(salu("s_lshl_b32", s_t0, s_w, "2")); e(salu("s_add_u32", s_t0, s_t0, str(LA))); e(valu("v_add_u32", vLw, s_t0, vLin))
        e(valu("v_lshlrev_b32", vSt, "4", T0)); e(valu("v_add_u32", vLr, str(LA), vSt))
        for q in range(6): e(valu("v_mov_b32", vm(q), "0"))
        e(salu("s_lshl_b32", s_t0, s_b, "3")); e(salu("s_add_u32", s_t0, s_t0, s_hkv)); e(salu("s_lshl_b32", s_t0, s_t0, "1")); e(salu("s_add_u32", s_t0, s_t0, s_s))
        e(salu("s_lshl_b32", s_t0, s_t0, "18"))
        e(salu("s_lshl_b32", s_t1, s_w, "13")); e(salu("s_add_u32", s_kb, s_t0, s_t1))
        e(salu("s_lshl_b32", s_t1, s_w, "7")); e(salu("s_add_u32", s_vb, s_t0, s_t1))
        e(salu("s_mul_i32", s_wob, s_h, str(256*896))); e(salu("s_lshl_b32", s_t1, s_w, "8")); e(salu("s_add_u32", s_wob, s_wob, s_t1))
        e(salu("s_lshl_b32", s_t0, s_b, "4")); e(salu("s_add_u32", s_t0, s_t0, s_h)); e(salu("s_lshl_b32", s_t0, s_t0, "1")); e(salu("s_add_u32", s_t0, s_t0, s_s))
        e(salu("s_lshl_b32", s_t0, s_t0, "2")); e(salu("s_add_u32", s_t0, s_t0, s_w)); e(salu("s_xor_b32", s_t1, s_t0, "4"))
        for (own, peer, mul, base) in ((s_x1o, s_x1p, 6144, WS_X1), (s_sto, s_stp, 512, WS_STAT), (s_flo, s_flp, 128, WS_FLAG1)):
            e(salu("s_mul_i32", own, s_t0, str(mul))); e(salu("s_mul_i32", peer, s_t1, str(mul)))
            if base: e(salu("s_add_u32", own, own, str(base))); e(salu("s_add_u32", peer, peer, str(base)))
        e(salu("s_lshl_b32", s_t0, s_b, "1")); e(salu("s_add_u32", s_t0, s_t0, s_s))
        e(salu("s_lshl_b32", s_cnt, s_t0, "7")); e(salu("s_add_u32", s_cnt, s_cnt, str(WS_CNT2)))
        e(salu("s_mul_i32", s_x2r, s_t0, str(16*SLAB2))); e(salu("s_add_u32", s_x2r, s_x2r, str(WS_X2)))
        e(salu("s_mul_i32", s_t1, s_h, str(SLAB2))); e(salu("s_add_u32", s_x2o, s_x2r, s_t1))
        e(salu("s_mul_i32", s_t1, s_w, str(12*1024))); e(salu("s_add_u32", s_x2o, s_x2o, s_t1))
        e(salu("s_mul_i32", s_t1, s_h, "168")); e(salu("s_mul_i32", s_t2, s_w, "42")); e(salu("s_add_u32", s_t1, s_t1, s_t2))
        e(valu("v_add_u32", T1, s_t1, vLane)); e(valu("v_lshlrev_b32", vRed, "4", T1))
        e(valu("v_lshrrev_b32", T3, "6", T1)); e(valu("v_mul_u32_u24", T0, "43", T3)); e(valu("v_lshrrev_b32", T0, "7", T0))
        e(valu("v_mul_u32_u24", T2, "3", T0)); e(valu("v_sub_u32", T3, T3, T2))
        e(valu("v_lshlrev_b32", T3, "4", T3)); e(valu("v_and_b32", T2, "15", T1)); e(valu("v_add_u32", T3, T3, T2))
        e(salu("s_mul_i32", s_t0, s_t0, "48")); e(valu("v_add_u32", T3, s_t0, T3)); e(valu("v_mul_u32_u24", T3, "896", T3))
        e(valu("v_bfe_u32", T2, T1, "4", "2")); e(valu("v_lshlrev_b32", T2, "3", T2)); e(valu("v_lshl_add_u32", T2, T0, "6", T2))
        e(valu("v_add_u32", vOut, T3, T2))
        e(salu("s_mov_b32", s_c, "0x3db8aa3b")); e(salu("s_mov_b32", s_pass, "0"))
        if self.diag:
            e(valu("v_mov_b32", vStamp, "0")); e(valu("v_writelane_b32", vStamp, "s98", "0")); self.ns = 1

    def qproj(self):
        e = self.e
        e(wait_vm("W0")); e(barrier()); e(self.stamp()); e(self.rd_qp(0))
        for j in range(14):
            s = (j & 1)*40
            mf = [mfma(v4(O(u, q)), a4(s + 4*u), a4(s + 16 + 4*q), "0" if j == 0 else v4(O(u, q))) for q in range(6) for u in range(4)]
            fill = []
            d = []
            if j <= 9:
                if j % 2 == 0: d += self.dma_x(j//2 + 2)
                d += self.dma_wq(j + 4)
            else:
                k = self.dma_k((j - 10) >> 1)
                d = k[:6] if j % 2 == 0 else k[6:]
            fill.append((1, wait_dsr()))
            fill += spread(d, 1, 9)
            if j == 5:
                T1 = vT[1]
                go = [salu("s_lshl_b32", s_t1, s_b, "2"), salu("s_and_b32", s_t2, "s2", "31"), salu("s_or_b32", s_t2, s_t2, s_w),
                      salu("s_cmp_lg_u32", s_t2, "0"), salu("s_cselect_b32", s_t1, "256", s_t1),
                      valu("v_mov_b32", vGo, "1"), valu("v_mov_b32", T1, s_t1),
                      vstore("buffer_store_dword", vGo, T1, sDbg, "0", aux="sc1")]
                fill.append((0, go))
            if j < 13:
                w = [wait_vm(f"W{j+1}")]
                if j & 1: w.append(barrier())
                if j == 9: w += [valu("v_add_u32", vXr[0], str(SH), vXr[0])]
                if j == 10: w += [valu("v_add_u32", vXr[1], str(SH), vXr[1])]
                fill.append((9, w))
                fill += spread(self.rd_qp(j + 1), 9, 23)
            else:
                for i in range(24):
                    q, u = divmod(i, 4)
                    o = O(u, q); f = (u >> 1)*6 + q
                    ep = [valu("v_cvt_pk_bf16_f32", f"v{o}", f"v{o}", f"v{o+1}"), valu("v_cvt_pk_bf16_f32", f"v{o+1}", f"v{o+2}", f"v{o+3}"),
                          ds_write("ds_write_b64", vQw if f < 8 else vQw2, R("v", o, 2), (u & 1)*512 + (f if f < 8 else f - 8)*1024)]
                    fill.append((i + 4, ep))
            e(weave(mf, fill))
        e(wait_dsw()); e(barrier()); e(self.stamp())

    def rd_q(self, ks, q):
        w, f = ks >> 1, (ks & 1)*6 + q
        if f < 8: return ds_read("ds_read_b128", a4(aQ(ks, q)), vQr, w*16384 + f*1024)
        return ds_read("ds_read_b128", a4(aQ(ks, q)), vPr, (QOV - SH) + w*4096 + (f - 8)*1024)

    def attention(self):
        e = self.e
        qr = [self.rd_q(ks, q) for half in range(2) for ks in range(8) for q in range(3*half, 3*half + 3)]
        e(self.dma_v(0)[:6])
        e(qr[:24])
        e(self.dma_v(0)[6:])
        e(qr[24:])
        e(label("L_attn"))
        e(wait_vm("K0")); e(self.rd_k(0))
        mf = self.mf_a(O0)
        fill = []
        k1 = self.rd_k(1)
        fill.append((27, wait_vm("K1")))
        for ks in range(8): fill.append((24 + 3*(ks + 1), k1[ks]))
        sm = [x for q in range(3) for x in self.softmax(0, q, O0)]
        fill += spread(sm, 28, 48)
        e(weave(mf, fill)); e(self.stamp())
        mf = self.mf_a(S0)
        fill = spread(self.dma_k(2), 0, 30)
        sm = [x for q in range(3, 6) for x in self.softmax(0, q, O0)]
        fill += spread(sm, 3, 26)
        fill.append((30, [wait_dsw(), barrier(), wait_vm("V0.0")]))
        fill += spread(self.rd_v(0, 0) + self.rd_p(0, 0), 30, 40)
        fill.append((40, wait_vm("V0.1")))
        fill += spread(self.rd_v(0, 1) + self.rd_p(0, 1), 40, 48)
        e(weave(mf, fill))
        for t in range(7):
            mf = self.mf_b(t)
            first = 0 if t == 0 else 2
            sm = [x for q in range(first, 6) for x in self.softmax(t + 1, q, S0)]
            if t < 6:
                fill = spread(self.dma_v(t + 1), 0, 32) + spread(sm, 2, 46)
                fill.append((36, wait_vm(f"K{t+2}")))
                fill += spread(self.rd_k(t + 2), 36, 46)
                if t == 2:
                    T1 = vT[1]
                    x = [salu("s_lshl_b32", s_t1, s_b, "1"), salu("s_add_u32", s_t1, s_t1, s_s), salu("s_lshl_b32", s_t1, s_t1, "2"), salu("s_add_u32", s_t1, s_t1, s_w),
                         salu("s_mul_i32", s_t1, s_t1, str(28*128)), salu("s_mul_i32", s_t2, s_h, str(256*896)), salu("s_add_u32", s_t1, s_t1, s_t2),
                         valu("v_min_u32", T1, "27", vLane), valu("v_lshlrev_b32", T1, "7", T1),
                         vload("buffer_load_dword", vT[4], T1, sWo, s_t1)]
                    fill.append((34, x))
                if t == 4:
                    x = [salu("s_lshl_b32", s_t1, s_b, "2"), valu("v_mov_b32", vT[1], "0"), vload("buffer_load_dword", vGo, vT[1], sDbg, s_t1, aux="sc1")]
                    fill.append((34, x))
            else:
                fill = spread(self.dma_wo(0, 0) + self.dma_wo(0, 1), 4, 40) + spread(sm, 2, 34)
                a = [vl(i) for i in range(6)]
                red = [valu("v_mov_b32", vT[0], a[0]), valu("v_mov_b32", vT[1], a[2]), valu("v_mov_b32", vT[2], a[4]),
                       valu("v_permlane32_swap_b32", vT[0], a[1]), valu("v_permlane32_swap_b32", vT[1], a[3]), valu("v_permlane32_swap_b32", vT[2], a[5]),
                       valu("v_add_f32", vT[0], vT[0], a[1]), valu("v_add_f32", vT[1], vT[1], a[3]), valu("v_add_f32", vT[2], vT[2], a[5]), valu("v_mov_b32", vT[3], vT[2]),
                       valu("v_permlane16_swap_b32", vT[0], vT[1]), valu("v_permlane16_swap_b32", vT[2], vT[3]),
                       valu("v_add_f32", vT[0], vT[0], vT[1]), valu("v_add_f32", vT[2], vT[2], vT[3]),
                       ds_write("ds_write_b32", vLw, vT[0], 0), ds_write("ds_write_b32", vLw, vT[2], 1024)]
                fill += spread(red, 35, 42)
                fill.append((43, [wait_dsw(), barrier(), wait_vm("V7.0")]))
                fill += spread(self.rd_p(7, 0, range(3, 6)) + self.rd_v(7, 0), 43, 48)
            e(weave(mf, fill))
            if t < 6:
                mf = self.mf_a(S0)
                nxt = self.dma_k(t + 3) if t + 3 <= 7 else self.dma_v(7)
                fill = spread(nxt, 0, 30)
                fill.append((14, [wait_dsw(), barrier()]))
                fill += spread(self.rd_p(t + 1, 0) + self.rd_p(t + 1, 1), 14, 30)
                fill.append((32, wait_vm(f"V{t+1}.0")))
                fill += spread(self.rd_v(t + 1, 0), 32, 39)
                fill.append((39, wait_vm(f"V{t+1}.1")))
                fill += spread(self.rd_v(t + 1, 1), 39, 47)
                sm = [x for q in range(2) for x in self.softmax(t + 2, q, S0)]
                fill += spread(sm, 28, 48)
                e(weave(mf, fill))
                if t in (1, 3): e(self.stamp())
        e(self.stamp())

    def tail(self):
        e = self.e
        loc = [(0, 0), (0, 2), (0, 1), (0, 3), (1, 0), (1, 2)]
        lr = [ds_read("ds_read_b128", v4(S(q)), vLr, loc[q][0]*1024 + loc[q][1]*256) for q in range(6)]
        mf = self.mf_b(7)
        fill = [(0, [wait_vm("V7.1")] + self.rd_p(7, 1, range(3, 6)) + self.rd_v(7, 1))]
        fill += spread(lr + self.rd_p(7, 0, range(3)) + self.rd_p(7, 1, range(3)), 2, 12)
        ls = []
        for q in range(6):
            s = S(q)
            ls += [valu("v_add_f32", f"v{s}", f"v{s}", f"v{s+1}"), valu("v_add_f32", f"v{s+2}", f"v{s+2}", f"v{s+3}"), valu("v_add_f32", vl(q), f"v{s}", f"v{s+2}")]
        ls += [valu("v_min3_f32", vT[0], vl(0), vl(1), vl(2)), valu("v_min3_f32", vT[0], vT[0], vl(3), vl(4)), valu("v_min_f32", vT[0], vT[0], vl(5)),
               valu("v_add_f32", vT[1], vl(0), vl(1)), valu("v_add_f32", vT[2], vl(2), vl(3)), valu("v_add_f32", vT[3], vl(4), vl(5)),
               valu("v_add_f32", vT[1], vT[1], vT[2]), valu("v_add_f32", vT[1], vT[1], vT[3]),
               salu("s_mov_b32", s_t1, "0x30800000"), salu("s_mov_b32", s_t2, "0x4e800000" if not self.force_fallback else "0"),
               valu("v_cmp_nle_f32", "s[6:7]", s_t1, vT[0]), valu("v_cmp_nge_f32", "vcc", s_t2, vT[1]),
               [salu("s_or_b64", "vcc", "vcc", "s[6:7]"), raw("s_cbranch_vccnz L_fallback", rd=regs("vcc")), label("L_checked")]]
        fill += spread(ls, 12, 24)
        pay = []
        for ksl in range(2):
            for q in range(3):
                d = S0 + (ksl*3 + q)*4
                for k in range(2):
                    o = O(2*ksl + k, 3 + q)
                    pay += [valu("v_cvt_pk_bf16_f32", f"v{d+2*k}", f"v{o}", f"v{o+1}"), valu("v_cvt_pk_bf16_f32", f"v{d+2*k+1}", f"v{o+2}", f"v{o+3}")]
                g = ksl*3 + q
                if g == 4: pay.append(salu("s_add_u32", s_t1, s_x1o, "4096"))
                pay.append(vstore("buffer_store_dwordx4", v4(d), vLin, sWs, s_x1o if g < 4 else s_t1, (g & 3)*1024, "sc1", tag="X1"))
        stat = [valu("v_mov_b32", f"v{LT0+i}", vl(3 + i)) for i in range(3)] + [valu("v_mov_b32", f"v{LT0+4+i}", vm(3 + i)) for i in range(3)] + \
               [valu("v_mov_b32", f"v{LT0+3}", "0"), valu("v_mov_b32", f"v{LT0+7}", "0"),
                vstore("buffer_store_dwordx4", v4(LT0), vSt, sWs, s_sto, 0, "sc1", tag="X1"), vstore("buffer_store_dwordx4", v4(LT0 + 4), vSt, sWs, s_sto, 256, "sc1", tag="X1")]
        fill += spread(stat, 24, 28) + spread(pay, 28, 46)
        e(weave(mf, fill)); e(self.stamp())
        e(self.dma_wo(0, 2))
        e(valu("v_readfirstlane_b32", s_pv, vGo))
        e(salu("s_cmp_eq_u32", s_pv, "0")); e(raw("s_cbranch_scc1 L_gowait")); e(label("L_go"))
        e(wait_vm("O0.1")); e(self.rd_wo(0, 0)); e(self.rd_wo(0, 1))
        e(wait_vm("X1"))
        e(salu("s_mov_b32", s_pv, "1")); e(raw(f"s_atomic_add {s_pv}, {sWsB}, {s_flo}"))
        e(self.stamp())
        for ks in range(3, 8): e(self.dma_wo(0, ks))
        e(barrier())
        e(salu("s_mov_b32", s_spin, "0")); e(label("L_poll1"))
        e(raw(f"s_load_dword {s_t1}, {sWsB}, {s_flp} glc")); e(salu("s_add_u32", s_spin, s_spin, "1")); e(wait_lgkm0())
        e(salu("s_cmp_gt_u32", s_spin, "0x100000")); e(raw("s_cbranch_scc1 L_poll1x"))
        e(salu("s_cmp_eq_u32", s_t1, "0")); e(raw("s_cbranch_scc1 L_poll1")); e(label("L_poll1x"))
        e(self.stamp())
        e(vload("buffer_load_dwordx4", v4(PF0 + 24), vSt, sWs, s_stp, 0, "sc1")); e(vload("buffer_load_dwordx4", v4(PF0 + 28), vSt, sWs, s_stp, 256, "sc1"))
        e(salu("s_add_u32", s_t1, s_x1p, "4096"))
        for g in range(6): e(vload("buffer_load_dwordx4", v4(PF0 + 4*g), vLin, sWs, s_x1p if g < 4 else s_t1, (g & 3)*1024, "sc1"))
        for ks in range(2, 8):
            e(wait_vm(f"O0.{ks}")); e(self.rd_wo(0, ks))
        e(salu("s_cmp_eq_u32", s_w, "3")); e(salu("s_cselect_b32", s_t1, "0x1000000", "0"))
        for i in range(4): e(valu("v_add_u32", vWo[i], s_t1, vWo[i]))
        e(wait_dsr())
        for ks in range(2): e(self.dma_wo(1, ks))
        pl = lambda q: f"v{PF0+24+q}"; pm = lambda q: f"v{PF0+28+q}"
        fo = lambda q: f"v{LT0+q}"; fp = lambda q: f"v{LT0+4+q}"
        for q in range(3):
            e(valu("v_min_f32", vT[0], vm(q), pm(q))); e(valu("v_sub_f32", fo(q), vT[0], vm(q))); e(valu("v_sub_f32", fp(q), vT[0], pm(q)))
            e(valu("v_exp_f32", fo(q), fo(q))); e(valu("v_exp_f32", fp(q), fp(q)))
        e(valu("v_min3_f32", vT[0], fo(0), fo(1), fo(2))); e(valu("v_cmp_neq_f32", "vcc", "1.0", vT[0]))
        for q in range(3):
            e(valu("v_mul_f32", vl(q), vl(q), fo(q))); e(valu("v_fma_f32", vl(q), pl(q), fp(q), vl(q)))
        e(raw("s_cbranch_vccnz L_rescale", rd=regs("vcc"))); e(label("L_rescaled"))
        for q in range(3): e(valu("v_rcp_f32", vl(q), vl(q)))
        for ksl in range(2):
            for q in range(3):
                g = ksl*3 + q; d = S0 + g*4; p = PF0 + 4*g
                for k in range(4):
                    o = O(2*ksl + (k >> 1), q) + 2*(k & 1)
                    e(valu("v_lshlrev_b32", vT[0], "16", f"v{p+k}")); e(valu("v_and_b32", vT[1], "0xffff0000", f"v{p+k}"))
                    e(valu("v_fmac_f32", f"v{o}", vT[0], fp(q))); e(valu("v_fmac_f32", f"v{o+1}", vT[1], fp(q)))
                    e(valu("v_cvt_pk_bf16_f32", f"v{d+k}", f"v{o}", f"v{o+1}"))
                e(ds_write("ds_write_b128", vOw, v4(d), g*1024))
                if g < 3: e(self.dma_wo(1, 2 + 2*g)); e(self.dma_wo(1, 3 + 2*g))
        e(wait_dsw()); e(barrier()); e(self.stamp())
        B = lambda ks, q: O0 + (ks*3 + q)*4
        e([ds_read("ds_read_b128", v4(B(ks, q)), vPr, (ks*3 + q)*1024) for ks in range(8) for q in range(3)])
        def acc(pi, u2, q): return PF0 + (pi & 1)*24 + (q*2 + u2)*4
        def epi(pi):
            o = []
            for q in range(3):
                d = S0 + (pi & 1)*12 + q*4
                for u2 in range(2):
                    a = acc(pi, u2, q)
                    o += [valu("v_mul_f32", f"v{a+r}", f"v{a+r}", vl(q)) for r in range(4)]
                    o += [valu("v_cvt_pk_bf16_f32", f"v{d+2*u2}", f"v{a}", f"v{a+1}"), valu("v_cvt_pk_bf16_f32", f"v{d+2*u2+1}", f"v{a+2}", f"v{a+3}")]
                if q == 0: o.append(salu("s_add_u32", s_t1, s_x2o, str(pi*3072)))
                o.append(vstore("buffer_store_dwordx4", v4(d), vLin, sWs, s_t1, q*1024, "sc1", tag="X2"))
            return o
        def pair(pi):
            col, pp = pi >> 1, pi & 1
            return [mfma(v4(acc(pi, u2, q)), a4(aW(col, ks, 2*pp + u2)), v4(B(ks, q)), "0" if ks == 0 else v4(acc(pi, u2, q)))
                    for ks in range(8) for u2 in range(2) for q in range(3)]
        c1 = []
        for ks in range(8): c1 += [wait_vm(f"O1.{ks}")] + self.rd_wo(1, ks)
        e(weave(pair(0), spread(c1[:36], 12, 48)))
        e(weave(pair(1), spread(epi(0), 3, 30) + spread(c1[36:], 0, 40)))
        e(salu("s_cmp_eq_u32", s_w, "3")); e(raw("s_cbranch_scc1 L_w3"))
        e(weave(pair(2), spread(epi(1), 3, 30)))
        e(weave(pair(3), spread(epi(2), 3, 30)))
        e(epi(3))
        e(label("L_opdone"))
        e(self.stamp())
        e(wait_vm0()); e(barrier()); e(self.stamp())
        e(salu("s_cmp_lg_u32", s_w, "0")); e(raw("s_cbranch_scc1 L_poll2x"))
        e(salu("s_mov_b32", s_pv, "1")); e(raw(f"s_atomic_add {s_pv}, {sWsB}, {s_cnt}"))
        e(salu("s_mov_b32", s_spin, "0")); e(label("L_poll2"))
        e(raw(f"s_load_dword {s_t1}, {sWsB}, {s_cnt} glc")); e(salu("s_add_u32", s_spin, s_spin, "1")); e(wait_lgkm0())
        e(salu("s_cmp_gt_u32", s_spin, "0x100000")); e(raw("s_cbranch_scc1 L_poll2x"))
        e(salu("s_cmp_lt_u32", s_t1, "16")); e(raw("s_cbranch_scc1 L_poll2")); e(label("L_poll2x"))
        e(barrier()); e(self.stamp())
        e(salu("s_mov_b32", "exec_lo", "-1")); e(salu("s_mov_b32", "exec_hi", "0x3ff"))
        for i in range(16):
            if i: e(salu("s_add_u32", s_x2r, s_x2r, str(SLAB2)))
            e(vload("buffer_load_dwordx4", v4(O0 + 4*i), vRed, sWs, s_x2r, 0, "sc1"))
        A = S0
        for i in range(16):
            for k in range(4):
                p = f"v{O0+4*i+k}"
                if i == 0:
                    e(valu("v_lshlrev_b32", f"v{A+2*k}", "16", p)); e(valu("v_and_b32", f"v{A+2*k+1}", "0xffff0000", p))
                else:
                    e(valu("v_lshlrev_b32", vT[0], "16", p)); e(valu("v_and_b32", vT[1], "0xffff0000", p))
                    e(valu("v_add_f32", f"v{A+2*k}", f"v{A+2*k}", vT[0])); e(valu("v_add_f32", f"v{A+2*k+1}", f"v{A+2*k+1}", vT[1]))
        for k in range(4): e(valu("v_cvt_pk_bf16_f32", f"v{A+8+k}", f"v{A+2*k}", f"v{A+2*k+1}"))
        e(vstore("buffer_store_dwordx2", R("v", A + 8, 2), vOut, sOut, "0", 0)); e(vstore("buffer_store_dwordx2", R("v", A + 10, 2), vOut, sOut, "0", 32))
        if self.diag:
            e(salu("s_mov_b64", "exec", "-1"))
            e(wait_vm0()); e(self.stamp())
            e(salu("s_lshl_b32", s_t0, "s2", "2")); e(salu("s_add_u32", s_t0, s_t0, s_w)); e(salu("s_lshl_b32", s_t0, s_t0, "8")); e(salu("s_add_u32", s_t0, s_t0, str(WS_DIAG)))
            e(valu("v_lshlrev_b32", vT[0], "2", vLane)); e(vstore("buffer_store_dword", vStamp, vT[0], sWs, s_t0))
        e(label("L_end")); e(raw("s_endpgm"))
        self._epi1 = epi(1)

    def side_paths(self):
        out = ""
        st = Stream(); e = st.emit
        e(label("L_w3")); e(nop(7)); e(self._epi1); e(raw("s_branch L_opdone")); out += st.text()
        st = Stream(); e = st.emit
        e(label("L_gowait")); e(salu("s_mov_b32", s_spin, "0")); e(salu("s_lshl_b32", s_t1, s_b, "2")); e(label("L_gow1"))
        e(raw(f"s_load_dword {s_pv}, s[52:53], {s_t1} glc")); e(salu("s_add_u32", s_spin, s_spin, "1")); e(wait_lgkm0())
        e(salu("s_cmp_gt_u32", s_spin, "0x100000")); e(raw("s_cbranch_scc1 L_go"))
        e(salu("s_cmp_eq_u32", s_pv, "0")); e(raw("s_cbranch_scc1 L_gow1")); e(raw("s_branch L_go")); out += st.text()
        st = Stream(); e = st.emit
        e(label("L_rescale"))
        for q in range(3):
            for u in range(4):
                for r in range(4): e(valu("v_mul_f32", f"v{O(u,q)+r}", f"v{O(u,q)+r}", f"v{LT0+q}"))
        e(raw("s_branch L_rescaled")); out += st.text()
        st = Stream(); e = st.emit
        e(label("L_fallback"))
        e(salu("s_cmp_lg_u32", s_pass, "0")); e(raw("s_cbranch_scc1 L_checked"))
        e(salu("s_mov_b32", s_pass, "1"))
        e(raw("s_waitcnt vmcnt(0) lgkmcnt(0)")); e(nop(15)); e(barrier())
        T0, T1, T2 = vT[0], vT[1], vT[2]
        e(valu("v_and_b32", T0, "15", vLane)); e(valu("v_lshlrev_b32", T0, "9", T0)); e(valu("v_lshrrev_b32", T1, "4", vLane)); e(valu("v_lshl_add_u32", T0, T1, "4", T0))
        e(salu("s_lshl_b32", s_t1, s_w, "13")); e(salu("s_sub_u32", s_t1, s_kb, s_t1)); e(salu("s_mov_b32", s_t2, "0"))
        for q in range(6): e(valu("v_mov_b32", vm(q), "0xff800000"))
        e(label("L_fb1"))
        for ks in range(8): e(vload("buffer_load_dwordx4", a4(aK(ks)), T0, sK, s_t1, ks*64))
        e(self.mf_a(S0))
        for q in range(6):
            e(valu("v_max3_f32", vm(q), vm(q), f"v{S(q)}", f"v{S(q)+1}")); e(valu("v_max3_f32", vm(q), vm(q), f"v{S(q)+2}", f"v{S(q)+3}"))
        e(salu("s_add_u32", s_t1, s_t1, "8192")); e(salu("s_add_u32", s_t2, s_t2, "1")); e(salu("s_cmp_lt_u32", s_t2, "32")); e(raw("s_cbranch_scc1 L_fb1"))
        for q in range(6):
            for op in ("v_permlane32_swap_b32", "v_permlane16_swap_b32"):
                e(valu("v_mov_b32", T1, vm(q))); e(valu(op, T1, vm(q))); e(valu("v_max_f32", vm(q), vm(q), T1))
            e(valu("v_mul_f32", vm(q), s_c, vm(q))); e(valu("v_sub_f32", vm(q), "0", vm(q)))
        e(self.dma_k(0)); e(self.dma_k(1)); e(self.dma_v(0))
        e(raw("s_waitcnt vmcnt(0) lgkmcnt(0)")); e(nop(7)); e(raw("s_branch L_attn")); out += st.text()
        return out

    def build(self):
        self.PFL = 3
        self.setup(); self.qproj(); self.attention(); self.tail()
        body = self.st.text() + self.side_paths()
        hdr = open("cdna_kernels/" + NAME + ".s.ref").read().split("; Override launch")[0]
        hdr += f"; @launch grid=(256,1,1) block=(256,1,1) lds={LDS_BYTES}\n"
        txt = hdr + f'.amdgcn_target "amdgcn-amd-amdhsa--gfx950"\n.text\n.globl {KN}\n.p2align 8\n.type {KN},@function\n{KN}:\n' + body
        txt += f"; pad so that the code prefetch stays inside the section\n.fill {max(0, (128*128*self.PFL + 4096)//4 - self.st.count)}, 4, 0xbf800000\ns_endpgm\n" if self.prefetch else ""
        txt += f""".section .rodata,"a"
.p2align 6
.amdhsa_kernel {KN}
  .amdhsa_next_free_vgpr 512
  .amdhsa_next_free_sgpr 102
  .amdhsa_accum_offset 256
  .amdhsa_group_segment_fixed_size 0
  .amdhsa_kernarg_size 64
  .amdhsa_user_sgpr_count 2
  .amdhsa_user_sgpr_kernarg_segment_ptr 1
  .amdhsa_system_sgpr_workgroup_id_x 1
.end_amdhsa_kernel
"""
        return txt

if __name__ == "__main__":
    g = Gen(); t = g.build()
    open("k_main.s", "w").write(t)
    print("instrs", g.st.count, "nops inserted", g.st.nops)
    open("k_diag.s", "w").write(Gen(diag=True).build())
    open("k_fb.s", "w").write(Gen(force_fallback=True).build())
    open("k_nopf.s", "w").write(Gen(prefetch=False).build())
```

```python
import sys
from asmlib import *

NAME = "standalone__gqa_block_cached__near_ridge"
KN = NAME + "_kernel"

RK, RV, SH = 0, 65536, 131072
LA = SH + 24576
QOV = SH + 16384
LDS_BYTES = 163840
WS_FLAG1, WS_CNT2, WS_STAT, WS_X1, WS_X2, WS_DIAG = 0, 0x20000, 0x40000, 0x100000, 0x800000, 0x1400000
WS_BYTES = 0x1800000
SLAB2 = 43008
def xslot(i):
    return i * 12288 if i < 5 else (12288 if i == 5 else 0)

sX, sK, sV, sWq, sWo, sOut, sWs, sDbg = (f"s[{a}:{a+3}]" for a in (8, 12, 16, 20, 24, 28, 32, 36))
sWsB = "s[54:55]"
s_w, s_hkv, s_b, s_hh, s_s, s_h = "s56", "s57", "s58", "s59", "s60", "s61"
s_kb, s_vb, s_rk, s_rv, s_xl = "s62", "s63", "s64", "s65", "s66"
s_xo = [f"s{67+i}" for i in range(7)]
s_wo = [f"s{74+i}" for i in range(7)]
s_t0, s_t1, s_wob = "s81", "s82", "s83"
s_x1o, s_x1p, s_sto, s_stp, s_flo, s_flp, s_cnt, s_x2o, s_x2r = (f"s{84+i}" for i in range(9))
s_pass, s_c, s_t2, s_t3 = "s93", "s94", "s95", "s3"
s_spin = "s4"; s_pv = "s5"
vLane = "v1"
vKd = [f"v{2+i}" for i in range(8)]
vVd = [f"v{10+i}" for i in range(4)]
vWd = [f"v{14+i}" for i in range(4)]
vXd = [f"v{18+i}" for i in range(3)]
vKr = [f"v{21+i}" for i in range(4)]
vTr = [f"v{25+i}" for i in range(4)]
vXr = ["v29", "v30"]
vQw, vQr, vPw, vPr, vLin, vLw, vLr, vSt, vGo, vStamp, vQw2, vOw = (f"v{31+i}" for i in range(12))
vT = [f"v{43+i}" for i in range(5)]
L0, M0_, LT0 = 48, 54, 84
S0, PF0, O0 = 60, 108, 156
vTr2 = [f"v{92+i}" for i in range(4)]
vWo = [f"v{96+i}" for i in range(4)]
vRed, vOut = "v100", "v101"
def vl(q): return f"v{L0+q}"
def vm(q): return f"v{M0_+q}"
def S(q, base=S0): return base + 4*q
def O(u, q): return O0 + (q*4 + u)*4
def PF(ks, q): return PF0 + (ks*6 + q)*4
def aQ(ks, q): return (ks*6 + q)*4
def aK(ks): return 192 + 4*ks
def aV(ks, u): return 224 + (ks*4 + u)*4
def aW(col, ks, u): return col*128 + (ks*4 + u)*4
v4 = lambda n: R("v", n, 4)
a4 = lambda n: R("a", n, 4)

class Gen:
    def __init__(self, diag=False, kvpol="nt", force_fallback=False, dump=None, prefetch=True, amp=None):
        self.st = Stream(); self.diag = diag; self.kvpol = kvpol; self.ns = 0
        self.amp = amp; self.force_fallback = force_fallback; self.dump = dump; self.prefetch = prefetch
    def e(self, x): self.st.emit(x)
    def stamp(self):
        if self.amp:
            i = self.ns; self.ns += 1
            if i == self.amp[0]: return [raw("s_memrealtime s[98:99]"), wait_lgkm0()]
            if i == self.amp[1]: return [raw("s_memrealtime s[100:101]"), wait_lgkm0()]
            return []
        if not self.diag: return []
        i = self.ns; self.ns += 1
        return [raw("s_memrealtime s[96:97]"), wait_lgkm0(), valu("v_writelane_b32", vStamp, "s96", str(i))]

    def dma_x(self, i):
        base = (RK if i < 5 else SH) + xslot(i)
        return [salu("s_add_u32", "m0", s_xl, str(base))] + [dma(vXd[k], sX, s_xo[i], k*1024, tag=f"X{i}") for k in range(3)]
    def dma_wq(self, j):
        o = [salu("s_add_u32", "m0", s_rv, str((j & 3)*4096))]
        so = s_wo[j >> 1]
        if j & 1:
            o.append(salu("s_add_u32", s_t0, so, str(32*8192))); so = s_t0
        return o + [dma(vWd[k], sWq, so, k*1024, tag=f"W{j}") for k in range(4)]
    def dma_k(self, t):
        o = []
        for g in range(2):
            grp = [salu("s_add_u32", "m0", s_rk, str((t & 1)*8192 + g*4096))]
            if g == 0: grp.append(salu("s_add_u32", s_t0, s_kb, str(t*32768)))
            grp += [dma(vKd[4*g + k], sK, s_t0, k*1024, self.kvpol, tag=f"K{t}") for k in range(4)]
            o += grp
        return o
    def dma_v(self, t):
        o = []
        for g in range(2):
            o += [salu("s_add_u32", "m0", s_rv, str(((t + 1) & 1)*8192 + g*4096)), salu("s_add_u32", s_t0, s_vb, str(t*32768 + g*16384))]
            o += [dma(vVd[k], sV, s_t0, k*1024, self.kvpol, tag=f"V{t}.{g}") for k in range(4)]
        return o
    def wo_lds(self, ks):
        if ks < 4: return s_rk, ks*4096, vTr2
        return s_rv, ((ks - 4) ^ 2)*4096, vTr
    def dma_wo(self, col, ks):
        b, off, _ = self.wo_lds(ks)
        return [salu("s_add_u32", "m0", b, str(off)), salu("s_add_u32", s_t0, s_wob, str(ks*32*896 + col*128))] + \
               [dma(vWo[k], sWo, s_t0, k*1024, tag=f"O{col}.{ks}") for k in range(4)]
    def rd_tr(self, dst, addr, off):
        return [ds_read("ds_read_b64_tr_b16", R("a", dst, 2), addr, off), ds_read("ds_read_b64_tr_b16", R("a", dst + 2, 2), addr, off + 2048)]
    def rd_qp(self, j):
        s = (j & 1)*40
        o = []
        for u in range(4): o += self.rd_tr(s + 4*u, vTr[u], (j & 3)*4096)
        for q in range(6): o.append(ds_read("ds_read_b128", a4(s + 16 + 4*q), vXr[j & 1], xslot(j >> 1) + q*2048))
        return o
    def rd_k(self, t):
        return [ds_read("ds_read_b128", a4(aK(ks)), vKr[ks & 3], (t & 1)*8192 + (ks >> 2)*256) for ks in range(8)]
    def rd_v(self, t, ks):
        o = []
        for u in range(4): o += self.rd_tr(aV(ks, u), vTr[u], ((t + 1) & 1)*8192 + ks*4096)
        return o
    def rd_p(self, t, ks, qs=range(6)):
        return [ds_read("ds_read_b128", v4(PF(ks, q)), vPr, (t & 1)*12288 + (ks*6 + q)*1024) for q in qs]
    def rd_wo(self, col, ks):
        _, off, ar = self.wo_lds(ks)
        o = []
        for u in range(4): o += self.rd_tr(aW(col, ks, u), ar[u], off)
        return o
    def softmax(self, t, q, base):
        s = S(q, base); o = []
        for r in range(4): o.append(valu("v_fma_f32", f"v{s+r}", f"v{s+r}", s_c, vm(q)))
        for r in range(4): o.append(valu("v_exp_f32", f"v{s+r}", f"v{s+r}"))
        if t == 0:
            o.append(valu("v_add_f32", vl(q), f"v{s}", f"v{s+1}"))
        else:
            o.append(valu("v_add_f32", vl(q), vl(q), f"v{s}")); o.append(valu("v_add_f32", vl(q), vl(q), f"v{s+1}"))
        o.append(valu("v_cvt_pk_bf16_f32", f"v{s}", f"v{s}", f"v{s+1}"))
        o.append(valu("v_add_f32", vl(q), vl(q), f"v{s+2}")); o.append(valu("v_add_f32", vl(q), vl(q), f"v{s+3}"))
        o.append(valu("v_cvt_pk_bf16_f32", f"v{s+1}", f"v{s+2}", f"v{s+3}"))
        o.append(ds_write("ds_write_b64", vPw, R("v", s, 2), (t & 1)*12288 + q*1024))
        return o
    def mf_a(self, base):
        return [mfma(v4(S(q, base)), a4(aK(ks)), a4(aQ(ks, q)), "0" if ks == 0 else v4(S(q, base)))
                for half in range(2) for ks in range(8) for q in range(3*half, 3*half + 3)]
    def mf_b(self, t):
        def m(ks, u, q): return mfma(v4(O(u, q)), a4(aV(ks, u)), v4(PF(ks, q)), "0" if (t == 0 and ks == 0) else v4(O(u, q)))
        if t < 7: return [m(ks, u, q) for ks in range(2) for u in range(4) for q in range(6)]
        return [m(ks, u, q) for qs in (range(3, 6), range(3)) for ks in range(2) for u in range(4) for q in qs]

    def setup(self):
        e = self.e
        e(salu("s_cmp_ge_u32", "s2", "256")); e(raw("s_cbranch_scc1 L_end"))
        e(raw("s_load_dwordx16 s[40:55], s[0:1], 0"))
        if self.diag or self.amp: e(raw("s_memrealtime s[98:99]"))
        if self.amp: self.ns = 1
        e(valu("v_lshrrev_b32", vT[0], "6", "v0")); e(valu("v_and_b32", vLane, "63", "v0"))
        e(valu("v_readfirstlane_b32", s_w, vT[0]))
        e(salu("s_and_b32", s_hkv, "s2", "7")); e(salu("s_lshr_b32", s_t0, "s2", "3"))
        e(salu("s_and_b32", s_hh, s_t0, "1")); e(salu("s_bfe_u32", s_s, s_t0, "0x10001")); e(salu("s_lshr_b32", s_b, s_t0, "2"))
        e(salu("s_lshl_b32", s_h, s_hkv, "1")); e(salu("s_add_u32", s_h, s_h, s_hh))
        e(salu("s_lshl_b32", s_rk, s_w, "14")); e(salu("s_add_u32", s_rv, s_rk, str(RV))); e(salu("s_mul_i32", s_xl, s_w, "3072"))
        T0, T1, T2, T3, T4 = vT
        e(valu("v_lshrrev_b32", T0, "3", vLane)); e(valu("v_and_b32", T1, "7", vLane))
        e(salu("s_and_b32", s_t1, s_t0, "3")); e(salu("s_lshl_b32", s_t1, s_t1, "1")); e(salu("s_add_u32", s_t1, s_t1, s_b))
        e(salu("s_cmp_ge_u32", s_t1, "7")); e(salu("s_cselect_b32", s_t2, "7", "0")); e(salu("s_sub_u32", s_t1, s_t1, s_t2))
        e(salu("s_mul_i32", s_t2, s_b, "86016"))
        e(salu("s_lshl_b32", s_t3, s_h, "9")); e(salu("s_lshl_b32", s_t0, s_w, "7")); e(salu("s_add_u32", s_t3, s_t3, s_t0))
        for i in range(7):
            e(salu("s_lshl_b32", s_xo[i], s_t1, "7")); e(salu("s_add_u32", s_xo[i], s_xo[i], s_t2))
            e(salu("s_lshl_b32", s_wo[i], s_t1, "19")); e(salu("s_add_u32", s_wo[i], s_wo[i], s_t3))
            if i < 6:
                e(salu("s_add_u32", s_t1, s_t1, "1")); e(salu("s_cmp_ge_u32", s_t1, "7")); e(salu("s_cselect_b32", s_t1, "0", s_t1))
        e(valu("v_lshrrev_b32", T2, "4", vLane))
        for i in range(3):
            e(salu("s_mul_i32", s_t0, s_w, "3")); e(salu("s_add_u32", s_t0, s_t0, str(i)))
            e(salu("s_and_b32", s_t1, s_t0, "1")); e(salu("s_lshl_b32", s_t1, s_t1, "2"))
            e(salu("s_mul_i32", s_t2, s_s, "6")); e(salu("s_add_u32", s_t0, s_t0, s_t2))
            e(salu("s_cmp_ge_u32", s_t0, "12")); e(salu("s_cselect_b32", s_t2, "12", "0")); e(salu("s_sub_u32", s_t0, s_t0, s_t2))
            e(salu("s_mul_i32", s_t0, s_t0, "7168")); e(salu("s_sub_u32", s_t0, s_t0, str(i*1024)))
            e(valu("v_add_u32", T3, s_t1, T2)); e(valu("v_xor_b32", T3, T3, T1)); e(valu("v_lshlrev_b32", T3, "4", T3))
            e(valu("v_mul_u32_u24", T4, "896", T0)); e(valu("v_add3_u32", vXd[i], T3, T4, s_t0))
        e(valu("v_lshlrev_b32", T3, "1", T2)); e(valu("v_xor_b32", T3, T3, T1)); e(valu("v_lshlrev_b32", T3, "4", T3))
        e(valu("v_lshrrev_b32", T4, "2", T0)); e(valu("v_lshlrev_b32", T4, "3", T4)); e(valu("v_and_b32", T1, "3", T0)); e(valu("v_add_u32", T4, T4, T1))
        e(valu("v_lshl_add_u32", T4, T4, "13", T3))
        for i in range(4):
            e(valu("v_add_u32", vWd[i], str((16*(i & 1) + 4*(i >> 1))*8192 - i*1024), T4))
        e(wait_lgkm0())
        for d, p, n in ((8, 40, 688128), (20, 46, 3670016), (12, 42, 33554432), (16, 44, 33554432), (24, 48, 3670016), (28, 50, 688128), (32, 54, WS_BYTES), (36, 52, 256)):
            e(salu("s_mov_b32", f"s{d}", f"s{p}")); e(salu("s_mov_b32", f"s{d+1}", f"s{p+1}"))
            e(salu("s_mov_b32", f"s{d+2}", str(n))); e(salu("s_mov_b32", f"s{d+3}", "0x20000"))
            if d == 20:
                e(self.dma_x(0)); e(self.dma_wq(0)); e(self.dma_wq(1))
        e(salu("s_lshl_b32", s_t0, s_b, "14")); e(salu("s_lshl_b32", s_t1, s_w, "13")); e(salu("s_add_u32", s_t0, s_t0, s_t1))
        e(salu("s_lshl_b32", s_t1, s_b, "8")); e(salu("s_add_u32", s_t1, s_t1, str(WS_CNT2)))
        e(salu("s_cmp_eq_u32", s_w, "2")); e(salu("s_cselect_b32", s_t0, s_t1, s_t0)); e(salu("s_cselect_b32", s_t1, "2", "7"))
        e(salu("s_cmp_eq_u32", s_w, "3")); e(salu("s_cselect_b32", s_t0, str(WS_BYTES), s_t0))
        e(salu("s_and_b32", s_t2, "s2", "31")); e(salu("s_cmp_lg_u32", s_t2, "0")); e(salu("s_cselect_b32", s_t0, str(WS_BYTES), s_t0))
        e(valu("v_lshlrev_b32", T1, s_t1, vLane)); e(valu("v_add_u32", T1, s_t0, T1)); e(valu("v_mov_b32", vGo, "0"))
        e(vstore("buffer_store_dword", vGo, T1, sWs, "0", aux="sc1", tag="Z"))
        e(self.dma_x(1)); e(self.dma_wq(2)); e(self.dma_wq(3))
        if self.prefetch:
            e(raw("s_getpc_b64 s[6:7]", wr=[("s", 6), ("s", 7)]))
            e(salu("s_lshr_b32", s_t0, "s2", "3")); e(salu("s_lshl_b32", s_t0, s_t0, "2")); e(salu("s_add_u32", s_t0, s_t0, s_w)); e(salu("s_mul_i32", s_t0, s_t0, str(self.PFL*128)))
            e(valu("v_lshl_add_u32", T1, vLane, "7", s_t0))
            e(salu("s_mov_b64", "exec", str((1 << self.PFL) - 1)))
            e(I(f"global_load_dword {vT[4]}, {T1}, s[6:7]", "vld", regs(T1), regs(vT[4])))
            e(salu("s_mov_b64", "exec", "-1"))
        for i in range(4):
            e(valu("v_lshl_add_u32", vVd[i], T0, "9", T3));
            if i: e(valu("v_add_u32", vVd[i], str(i*3072), vVd[i]))
            e(valu("v_mul_u32_u24", vWo[i], "896", T0)); e(valu("v_add_u32", vWo[i], vWo[i], T3))
            if i: e(valu("v_add_u32", vWo[i], str(i*(7168 - 1024)), vWo[i]))
        e(valu("v_lshrrev_b32", T0, "5", vLane)); e(valu("v_and_b32", T1, "31", vLane)); e(valu("v_xor_b32", T1, T1, T0))
        e(valu("v_lshlrev_b32", T1, "4", T1)); e(valu("v_lshl_add_u32", T1, T0, "9", T1))
        for i in range(8):
            e(valu("v_xor_b32", vKd[i], str(i*32), T1))
            if i >= 4: e(valu("v_add_u32", vKd[i], "4096", vKd[i]))
        e(valu("v_and_b32", T0, "15", vLane))
        e(valu("v_xor_b32", T1, T0, T2)); e(valu("v_lshlrev_b32", T1, "4", T1)); e(valu("v_lshl_add_u32", T1, T0, "9", T1))
        for i in range(4):
            e(valu("v_xor_b32", vKr[i], str(i*64), T1)); e(valu("v_add_u32", vKr[i], s_rk, vKr[i]))
        e(valu("v_lshrrev_b32", T1, "1", T0)); e(valu("v_xor_b32", T1, T1, T2)); e(valu("v_lshlrev_b32", T1, "4", T1)); e(valu("v_lshl_add_u32", vXr[0], T0, "7", T1))
        e(valu("v_xor_b32", vXr[1], "64", vXr[0]))
        e(valu("v_lshrrev_b32", T1, "2", vLane)); e(valu("v_lshlrev_b32", T1, "7", T1))
        e(valu("v_bfe_u32", T3, vLane, "3", "2")); e(valu("v_lshl_add_u32", T1, T3, "5", T1))
        e(valu("v_and_b32", T3, "3", vLane)); e(valu("v_lshl_add_u32", T1, T3, "3", T1))
        for i in range(4):
            e(valu("v_xor_b32", T3, str(i*32), T1)); e(valu("v_add_u32", vTr[i], s_rv, T3)); e(valu("v_add_u32", vTr2[i], s_rk, T3))
        e(valu("v_lshlrev_b32", vLin, "4", vLane))
        e(valu("v_add_u32", vQr, str(RV), vLin)); e(valu("v_add_u32", vPr, str(SH), vLin))
        e(valu("v_lshrrev_b32", T1, "1", T2)); e(valu("v_lshl_add_u32", T1, T1, "4", T0)); e(valu("v_lshlrev_b32", T1, "4", T1))
        e(valu("v_and_b32", T3, "1", T2)); e(valu("v_lshl_add_u32", T1, T3, "3", T1))
        e(valu("v_add_u32", vQw, s_rv, T1))
        e(salu("s_lshl_b32", s_t0, s_w, "12")); e(salu("s_add_u32", s_t0, s_t0, str(QOV))); e(valu("v_add_u32", vQw2, s_t0, T1))
        e(salu("s_and_b32", s_t0, s_w, "1")); e(salu("s_lshl_b32", s_t0, s_t0, "3")); e(salu("s_lshr_b32", s_t1, s_w, "1")); e(salu("s_mul_i32", s_t1, s_t1, "6144"))
        e(salu("s_add_u32", s_t0, s_t0, s_t1)); e(valu("v_add_u32", vPw, s_t0, vPr))
        e(salu("s_mul_i32", s_t0, s_w, "6144")); e(valu("v_add_u32", vOw, s_t0, vPr))
        e(salu("s_lshl_b32", s_t0, s_w, "2")); e(salu("s_add_u32", s_t0, s_t0, str(LA))); e(valu("v_add_u32", vLw, s_t0, vLin))
        e(valu("v_lshlrev_b32", vSt, "4", T0)); e(valu("v_add_u32", vLr, str(LA), vSt))
        for q in range(6): e(valu("v_mov_b32", vm(q), "0"))
        e(salu("s_lshl_b32", s_t0, s_b, "3")); e(salu("s_add_u32", s_t0, s_t0, s_hkv)); e(salu("s_lshl_b32", s_t0, s_t0, "1")); e(salu("s_add_u32", s_t0, s_t0, s_s))
        e(salu("s_lshl_b32", s_t0, s_t0, "18"))
        e(salu("s_lshl_b32", s_t1, s_w, "13")); e(salu("s_add_u32", s_kb, s_t0, s_t1))
        e(salu("s_lshl_b32", s_t1, s_w, "7")); e(salu("s_add_u32", s_vb, s_t0, s_t1))
        e(salu("s_mul_i32", s_wob, s_h, str(256*896))); e(salu("s_lshl_b32", s_t1, s_w, "8")); e(salu("s_add_u32", s_wob, s_wob, s_t1))
        e(salu("s_lshl_b32", s_t0, s_b, "4")); e(salu("s_add_u32", s_t0, s_t0, s_h)); e(salu("s_lshl_b32", s_t0, s_t0, "1")); e(salu("s_add_u32", s_t0, s_t0, s_s))
        e(salu("s_lshl_b32", s_t0, s_t0, "2")); e(salu("s_add_u32", s_t0, s_t0, s_w)); e(salu("s_xor_b32", s_t1, s_t0, "4"))
        for (own, peer, mul, base) in ((s_x1o, s_x1p, 6144, WS_X1), (s_sto, s_stp, 512, WS_STAT), (s_flo, s_flp, 128, WS_FLAG1)):
            e(salu("s_mul_i32", own, s_t0, str(mul))); e(salu("s_mul_i32", peer, s_t1, str(mul)))
            if base: e(salu("s_add_u32", own, own, str(base))); e(salu("s_add_u32", peer, peer, str(base)))
        e(salu("s_lshl_b32", s_t0, s_b, "1")); e(salu("s_add_u32", s_t0, s_t0, s_s))
        e(salu("s_lshl_b32", s_cnt, s_t0, "7")); e(salu("s_add_u32", s_cnt, s_cnt, str(WS_CNT2)))
        e(salu("s_mul_i32", s_x2r, s_t0, str(16*SLAB2))); e(salu("s_add_u32", s_x2r, s_x2r, str(WS_X2)))
        e(salu("s_mul_i32", s_t1, s_h, str(SLAB2))); e(salu("s_add_u32", s_x2o, s_x2r, s_t1))
        e(salu("s_mul_i32", s_t1, s_w, str(12*1024))); e(salu("s_add_u32", s_x2o, s_x2o, s_t1))
        e(salu("s_mul_i32", s_t1, s_h, "168")); e(salu("s_mul_i32", s_t2, s_w, "42")); e(salu("s_add_u32", s_t1, s_t1, s_t2))
        e(valu("v_add_u32", T1, s_t1, vLane)); e(valu("v_lshlrev_b32", vRed, "4", T1))
        e(valu("v_lshrrev_b32", T3, "6", T1)); e(valu("v_mul_u32_u24", T0, "43", T3)); e(valu("v_lshrrev_b32", T0, "7", T0))
        e(valu("v_mul_u32_u24", T2, "3", T0)); e(valu("v_sub_u32", T3, T3, T2))
        e(valu("v_lshlrev_b32", T3, "4", T3)); e(valu("v_and_b32", T2, "15", T1)); e(valu("v_add_u32", T3, T3, T2))
        e(salu("s_mul_i32", s_t0, s_t0, "48")); e(valu("v_add_u32", T3, s_t0, T3)); e(valu("v_mul_u32_u24", T3, "896", T3))
        e(valu("v_bfe_u32", T2, T1, "4", "2")); e(valu("v_lshlrev_b32", T2, "3", T2)); e(valu("v_lshl_add_u32", T2, T0, "6", T2))
        e(valu("v_add_u32", vOut, T3, T2))
        e(salu("s_mov_b32", s_c, "0x3db8aa3b")); e(salu("s_mov_b32", s_pass, "0"))
        if self.diag:
            e(valu("v_mov_b32", vStamp, "0")); e(valu("v_writelane_b32", vStamp, "s98", "0")); self.ns = 1

    def qproj(self):
        e = self.e
        e(wait_vm("W0")); e(barrier()); e(self.stamp()); e(self.rd_qp(0))
        for j in range(14):
            s = (j & 1)*40
            mf = [mfma(v4(O(u, q)), a4(s + 4*u), a4(s + 16 + 4*q), "0" if j == 0 else v4(O(u, q))) for q in range(6) for u in range(4)]
            fill = []
            d = []
            if j <= 9:
                if j % 2 == 0: d += self.dma_x(j//2 + 2)
                d += self.dma_wq(j + 4)
            else:
                k = self.dma_k((j - 10) >> 1)
                d = k[:6] if j % 2 == 0 else k[6:]
            fill.append((1, wait_dsr()))
            fill += spread(d, 1, 9)
            if j == 5:
                T1 = vT[1]
                go = [salu("s_lshl_b32", s_t1, s_b, "2"), salu("s_and_b32", s_t2, "s2", "31"), salu("s_or_b32", s_t2, s_t2, s_w),
                      salu("s_cmp_lg_u32", s_t2, "0"), salu("s_cselect_b32", s_t1, "256", s_t1),
                      valu("v_mov_b32", vGo, "1"), valu("v_mov_b32", T1, s_t1),
                      vstore("buffer_store_dword", vGo, T1, sDbg, "0", aux="sc1")]
                fill.append((0, go))
            if j < 13:
                w = [wait_vm(f"W{j+1}")]
                if j & 1: w.append(barrier())
                if j == 9: w += [valu("v_add_u32", vXr[0], str(SH), vXr[0])]
                if j == 10: w += [valu("v_add_u32", vXr[1], str(SH), vXr[1])]
                fill.append((9, w))
                fill += spread(self.rd_qp(j + 1), 9, 23)
            else:
                for i in range(24):
                    q, u = divmod(i, 4)
                    o = O(u, q); f = (u >> 1)*6 + q
                    ep = [valu("v_cvt_pk_bf16_f32", f"v{o}", f"v{o}", f"v{o+1}"), valu("v_cvt_pk_bf16_f32", f"v{o+1}", f"v{o+2}", f"v{o+3}"),
                          ds_write("ds_write_b64", vQw if f < 8 else vQw2, R("v", o, 2), (u & 1)*512 + (f if f < 8 else f - 8)*1024)]
                    fill.append((i + 4, ep))
            e(weave(mf, fill))
        e(wait_dsw()); e(barrier()); e(self.stamp())

    def rd_q(self, ks, q):
        w, f = ks >> 1, (ks & 1)*6 + q
        if f < 8: return ds_read("ds_read_b128", a4(aQ(ks, q)), vQr, w*16384 + f*1024)
        return ds_read("ds_read_b128", a4(aQ(ks, q)), vPr, (QOV - SH) + w*4096 + (f - 8)*1024)

    def attention(self):
        e = self.e
        qr = [self.rd_q(ks, q) for half in range(2) for ks in range(8) for q in range(3*half, 3*half + 3)]
        e(self.dma_v(0)[:6])
        e(qr[:24])
        e(self.dma_v(0)[6:])
        e(qr[24:])
        e(label("L_attn"))
        e(wait_vm("K0")); e(self.rd_k(0))
        mf = self.mf_a(O0)
        fill = []
        k1 = self.rd_k(1)
        fill.append((27, wait_vm("K1")))
        for ks in range(8): fill.append((24 + 3*(ks + 1), k1[ks]))
        sm = [x for q in range(3) for x in self.softmax(0, q, O0)]
        fill += spread(sm, 28, 48)
        e(weave(mf, fill)); e(self.stamp())
        mf = self.mf_a(S0)
        fill = spread(self.dma_k(2), 0, 30)
        sm = [x for q in range(3, 6) for x in self.softmax(0, q, O0)]
        fill += spread(sm, 3, 26)
        fill.append((30, [wait_dsw(), barrier(), wait_vm("V0.0")]))
        fill += spread(self.rd_v(0, 0) + self.rd_p(0, 0), 30, 40)
        fill.append((40, wait_vm("V0.1")))
        fill += spread(self.rd_v(0, 1) + self.rd_p(0, 1), 40, 48)
        e(weave(mf, fill))
        for t in range(7):
            mf = self.mf_b(t)
            first = 0 if t == 0 else 2
            sm = [x for q in range(first, 6) for x in self.softmax(t + 1, q, S0)]
            if t < 6:
                fill = spread(self.dma_v(t + 1), 0, 32) + spread(sm, 2, 46)
                fill.append((36, wait_vm(f"K{t+2}")))
                fill += spread(self.rd_k(t + 2), 36, 46)
                if t == 2:
                    T1 = vT[1]
                    x = [salu("s_lshl_b32", s_t1, s_b, "1"), salu("s_add_u32", s_t1, s_t1, s_s), salu("s_lshl_b32", s_t1, s_t1, "2"), salu("s_add_u32", s_t1, s_t1, s_w),
                         salu("s_mul_i32", s_t1, s_t1, str(28*128)), salu("s_mul_i32", s_t2, s_h, str(256*896)), salu("s_add_u32", s_t1, s_t1, s_t2),
                         valu("v_min_u32", T1, "27", vLane), valu("v_lshlrev_b32", T1, "7", T1),
                         vload("buffer_load_dword", vT[4], T1, sWo, s_t1)]
                    fill.append((34, x))
                if t == 4:
                    x = [salu("s_lshl_b32", s_t1, s_b, "2"), valu("v_mov_b32", vT[1], "0"), vload("buffer_load_dword", vGo, vT[1], sDbg, s_t1, aux="sc1")]
                    fill.append((34, x))
            else:
                fill = spread(self.dma_wo(0, 0) + self.dma_wo(0, 1), 4, 40) + spread(sm, 2, 34)
                a = [vl(i) for i in range(6)]
                red = [valu("v_mov_b32", vT[0], a[0]), valu("v_mov_b32", vT[1], a[2]), valu("v_mov_b32", vT[2], a[4]),
                       valu("v_permlane32_swap_b32", vT[0], a[1]), valu("v_permlane32_swap_b32", vT[1], a[3]), valu("v_permlane32_swap_b32", vT[2], a[5]),
                       valu("v_add_f32", vT[0], vT[0], a[1]), valu("v_add_f32", vT[1], vT[1], a[3]), valu("v_add_f32", vT[2], vT[2], a[5]), valu("v_mov_b32", vT[3], vT[2]),
                       valu("v_permlane16_swap_b32", vT[0], vT[1]), valu("v_permlane16_swap_b32", vT[2], vT[3]),
                       valu("v_add_f32", vT[0], vT[0], vT[1]), valu("v_add_f32", vT[2], vT[2], vT[3]),
                       ds_write("ds_write_b32", vLw, vT[0], 0), ds_write("ds_write_b32", vLw, vT[2], 1024)]
                fill += spread(red, 35, 42)
                fill.append((43, [wait_dsw(), barrier(), wait_vm("V7.0")]))
                fill += spread(self.rd_p(7, 0, range(3, 6)) + self.rd_v(7, 0), 43, 48)
            e(weave(mf, fill))
            if t < 6:
                mf = self.mf_a(S0)
                nxt = self.dma_k(t + 3) if t + 3 <= 7 else self.dma_v(7)
                fill = spread(nxt, 0, 30)
                fill.append((14, [wait_dsw(), barrier()]))
                fill += spread(self.rd_p(t + 1, 0) + self.rd_p(t + 1, 1), 14, 30)
                fill.append((32, wait_vm(f"V{t+1}.0")))
                fill += spread(self.rd_v(t + 1, 0), 32, 39)
                fill.append((39, wait_vm(f"V{t+1}.1")))
                fill += spread(self.rd_v(t + 1, 1), 39, 47)
                sm = [x for q in range(2) for x in self.softmax(t + 2, q, S0)]
                fill += spread(sm, 28, 48)
                e(weave(mf, fill))
                if t in (1, 3): e(self.stamp())
        e(self.stamp())

    def tail(self):
        e = self.e
        loc = [(0, 0), (0, 2), (0, 1), (0, 3), (1, 0), (1, 2)]
        lr = [ds_read("ds_read_b128", v4(S(q)), vLr, loc[q][0]*1024 + loc[q][1]*256) for q in range(6)]
        mf = self.mf_b(7)
        fill = [(0, [wait_vm("V7.1")] + self.rd_p(7, 1, range(3, 6)) + self.rd_v(7, 1))]
        fill += spread(lr + self.rd_p(7, 0, range(3)) + self.rd_p(7, 1, range(3)), 2, 12)
        ls = []
        for q in range(6):
            s = S(q)
            ls += [valu("v_add_f32", f"v{s}", f"v{s}", f"v{s+1}"), valu("v_add_f32", f"v{s+2}", f"v{s+2}", f"v{s+3}"), valu("v_add_f32", vl(q), f"v{s}", f"v{s+2}")]
        ls += [valu("v_min3_f32", vT[0], vl(0), vl(1), vl(2)), valu("v_min3_f32", vT[0], vT[0], vl(3), vl(4)), valu("v_min_f32", vT[0], vT[0], vl(5)),
               valu("v_add_f32", vT[1], vl(0), vl(1)), valu("v_add_f32", vT[2], vl(2), vl(3)), valu("v_add_f32", vT[3], vl(4), vl(5)),
               valu("v_add_f32", vT[1], vT[1], vT[2]), valu("v_add_f32", vT[1], vT[1], vT[3]),
               salu("s_mov_b32", s_t1, "0x30800000"), salu("s_mov_b32", s_t2, "0x4e800000" if not self.force_fallback else "0"),
               valu("v_cmp_nle_f32", "s[6:7]", s_t1, vT[0]), valu("v_cmp_nge_f32", "vcc", s_t2, vT[1]),
               [salu("s_or_b64", "vcc", "vcc", "s[6:7]"), raw("s_cbranch_vccnz L_fallback", rd=regs("vcc")), label("L_checked")]]
        fill += spread(ls, 12, 24)
        pay = []
        for ksl in range(2):
            for q in range(3):
                d = S0 + (ksl*3 + q)*4
                for k in range(2):
                    o = O(2*ksl + k, 3 + q)
                    pay += [valu("v_cvt_pk_bf16_f32", f"v{d+2*k}", f"v{o}", f"v{o+1}"), valu("v_cvt_pk_bf16_f32", f"v{d+2*k+1}", f"v{o+2}", f"v{o+3}")]
                g = ksl*3 + q
                if g == 4: pay.append(salu("s_add_u32", s_t1, s_x1o, "4096"))
                pay.append(vstore("buffer_store_dwordx4", v4(d), vLin, sWs, s_x1o if g < 4 else s_t1, (g & 3)*1024, "sc1", tag="X1"))
        stat = [valu("v_mov_b32", f"v{LT0+i}", vl(3 + i)) for i in range(3)] + [valu("v_mov_b32", f"v{LT0+4+i}", vm(3 + i)) for i in range(3)] + \
               [valu("v_mov_b32", f"v{LT0+3}", "0"), valu("v_mov_b32", f"v{LT0+7}", "0"),
                vstore("buffer_store_dwordx4", v4(LT0), vSt, sWs, s_sto, 0, "sc1", tag="X1"), vstore("buffer_store_dwordx4", v4(LT0 + 4), vSt, sWs, s_sto, 256, "sc1", tag="X1")]
        fill += spread(stat, 24, 28) + spread(pay, 28, 46)
        e(weave(mf, fill)); e(self.stamp())
        e(self.dma_wo(0, 2))
        e(valu("v_readfirstlane_b32", s_pv, vGo))
        e(salu("s_cmp_eq_u32", s_pv, "0")); e(raw("s_cbranch_scc1 L_gowait")); e(label("L_go"))
        e(wait_vm("O0.1")); e(self.rd_wo(0, 0)); e(self.rd_wo(0, 1))
        e(wait_vm("X1"))
        e(salu("s_mov_b32", s_pv, "1")); e(raw(f"s_atomic_add {s_pv}, {sWsB}, {s_flo}"))
        e(self.stamp())
        for ks in range(3, 8): e(self.dma_wo(0, ks))
        e(barrier())
        e(salu("s_mov_b32", s_spin, "0")); e(label("L_poll1"))
        e(raw(f"s_load_dword {s_t1}, {sWsB}, {s_flp} glc")); e(salu("s_add_u32", s_spin, s_spin, "1")); e(wait_lgkm0())
        e(salu("s_cmp_gt_u32", s_spin, "0x100000")); e(raw("s_cbranch_scc1 L_poll1x"))
        e(salu("s_cmp_eq_u32", s_t1, "0")); e(raw("s_cbranch_scc1 L_poll1")); e(label("L_poll1x"))
        e(self.stamp())
        e(vload("buffer_load_dwordx4", v4(PF0 + 24), vSt, sWs, s_stp, 0, "sc1")); e(vload("buffer_load_dwordx4", v4(PF0 + 28), vSt, sWs, s_stp, 256, "sc1"))
        e(salu("s_add_u32", s_t1, s_x1p, "4096"))
        for g in range(6): e(vload("buffer_load_dwordx4", v4(PF0 + 4*g), vLin, sWs, s_x1p if g < 4 else s_t1, (g & 3)*1024, "sc1"))
        for ks in range(2, 8):
            e(wait_vm(f"O0.{ks}")); e(self.rd_wo(0, ks))
        e(salu("s_cmp_eq_u32", s_w, "3")); e(salu("s_cselect_b32", s_t1, "0x1000000", "0"))
        for i in range(4): e(valu("v_add_u32", vWo[i], s_t1, vWo[i]))
        e(wait_dsr())
        for ks in range(2): e(self.dma_wo(1, ks))
        pl = lambda q: f"v{PF0+24+q}"; pm = lambda q: f"v{PF0+28+q}"
        fo = lambda q: f"v{LT0+q}"; fp = lambda q: f"v{LT0+4+q}"
        for q in range(3):
            e(valu("v_min_f32", vT[0], vm(q), pm(q))); e(valu("v_sub_f32", fo(q), vT[0], vm(q))); e(valu("v_sub_f32", fp(q), vT[0], pm(q)))
            e(valu("v_exp_f32", fo(q), fo(q))); e(valu("v_exp_f32", fp(q), fp(q)))
        e(valu("v_min3_f32", vT[0], fo(0), fo(1), fo(2))); e(valu("v_cmp_neq_f32", "vcc", "1.0", vT[0]))
        for q in range(3):
            e(valu("v_mul_f32", vl(q), vl(q), fo(q))); e(valu("v_fma_f32", vl(q), pl(q), fp(q), vl(q)))
        e(raw("s_cbranch_vccnz L_rescale", rd=regs("vcc"))); e(label("L_rescaled"))
        for q in range(3): e(valu("v_rcp_f32", vl(q), vl(q)))
        for ksl in range(2):
            for q in range(3):
                g = ksl*3 + q; d = S0 + g*4; p = PF0 + 4*g
                for k in range(4):
                    o = O(2*ksl + (k >> 1), q) + 2*(k & 1)
                    e(valu("v_lshlrev_b32", vT[0], "16", f"v{p+k}")); e(valu("v_and_b32", vT[1], "0xffff0000", f"v{p+k}"))
                    e(valu("v_fmac_f32", f"v{o}", vT[0], fp(q))); e(valu("v_fmac_f32", f"v{o+1}", vT[1], fp(q)))
                    e(valu("v_cvt_pk_bf16_f32", f"v{d+k}", f"v{o}", f"v{o+1}"))
                e(ds_write("ds_write_b128", vOw, v4(d), g*1024))
                if g < 3: e(self.dma_wo(1, 2 + 2*g)); e(self.dma_wo(1, 3 + 2*g))
        e(wait_dsw()); e(barrier()); e(self.stamp())
        B = lambda ks, q: O0 + (ks*3 + q)*4
        e([ds_read("ds_read_b128", v4(B(ks, q)), vPr, (ks*3 + q)*1024) for ks in range(8) for q in range(3)])
        def acc(pi, u2, q): return PF0 + (pi & 1)*24 + (q*2 + u2)*4
        def epi(pi):
            o = []
            for q in range(3):
                d = S0 + (pi & 1)*12 + q*4
                for u2 in range(2):
                    a = acc(pi, u2, q)
                    o += [valu("v_mul_f32", f"v{a+r}", f"v{a+r}", vl(q)) for r in range(4)]
                    o += [valu("v_cvt_pk_bf16_f32", f"v{d+2*u2}", f"v{a}", f"v{a+1}"), valu("v_cvt_pk_bf16_f32", f"v{d+2*u2+1}", f"v{a+2}", f"v{a+3}")]
                if q == 0: o.append(salu("s_add_u32", s_t1, s_x2o, str(pi*3072)))
                o.append(vstore("buffer_store_dwordx4", v4(d), vLin, sWs, s_t1, q*1024, "sc1", tag="X2"))
            return o
        def pair(pi):
            col, pp = pi >> 1, pi & 1
            return [mfma(v4(acc(pi, u2, q)), a4(aW(col, ks, 2*pp + u2)), v4(B(ks, q)), "0" if ks == 0 else v4(acc(pi, u2, q)))
                    for ks in range(8) for u2 in range(2) for q in range(3)]
        c1 = []
        for ks in range(8): c1 += [wait_vm(f"O1.{ks}")] + self.rd_wo(1, ks)
        e(weave(pair(0), spread(c1[:36], 12, 48)))
        e(weave(pair(1), spread(epi(0), 3, 30) + spread(c1[36:], 0, 40)))
        e(salu("s_cmp_eq_u32", s_w, "3")); e(raw("s_cbranch_scc1 L_w3"))
        e(weave(pair(2), spread(epi(1), 3, 30)))
        e(weave(pair(3), spread(epi(2), 3, 30)))
        e(epi(3))
        e(label("L_opdone"))
        e(self.stamp())
        e(wait_vm0()); e(barrier()); e(self.stamp())
        e(salu("s_cmp_lg_u32", s_w, "0")); e(raw("s_cbranch_scc1 L_poll2x"))
        e(salu("s_mov_b32", s_pv, "1")); e(raw(f"s_atomic_add {s_pv}, {sWsB}, {s_cnt}"))
        e(salu("s_mov_b32", s_spin, "0")); e(label("L_poll2"))
        e(raw(f"s_load_dword {s_t1}, {sWsB}, {s_cnt} glc")); e(salu("s_add_u32", s_spin, s_spin, "1")); e(wait_lgkm0())
        e(salu("s_cmp_gt_u32", s_spin, "0x100000")); e(raw("s_cbranch_scc1 L_poll2x"))
        e(salu("s_cmp_lt_u32", s_t1, "16")); e(raw("s_cbranch_scc1 L_poll2")); e(label("L_poll2x"))
        e(barrier()); e(self.stamp())
        e(salu("s_mov_b32", "exec_lo", "-1")); e(salu("s_mov_b32", "exec_hi", "0x3ff"))
        for i in range(16):
            if i: e(salu("s_add_u32", s_x2r, s_x2r, str(SLAB2)))
            e(vload("buffer_load_dwordx4", v4(O0 + 4*i), vRed, sWs, s_x2r, 0, "sc1"))
        A = S0
        for i in range(16):
            for k in range(4):
                p = f"v{O0+4*i+k}"
                if i == 0:
                    e(valu("v_lshlrev_b32", f"v{A+2*k}", "16", p)); e(valu("v_and_b32", f"v{A+2*k+1}", "0xffff0000", p))
                else:
                    e(valu("v_lshlrev_b32", vT[0], "16", p)); e(valu("v_and_b32", vT[1], "0xffff0000", p))
                    e(valu("v_add_f32", f"v{A+2*k}", f"v{A+2*k}", vT[0])); e(valu("v_add_f32", f"v{A+2*k+1}", f"v{A+2*k+1}", vT[1]))
        for k in range(4): e(valu("v_cvt_pk_bf16_f32", f"v{A+8+k}", f"v{A+2*k}", f"v{A+2*k+1}"))
        e(vstore("buffer_store_dwordx2", R("v", A + 8, 2), vOut, sOut, "0", 0)); e(vstore("buffer_store_dwordx2", R("v", A + 10, 2), vOut, sOut, "0", 32))
        if self.diag:
            e(salu("s_mov_b64", "exec", "-1"))
            e(wait_vm0()); e(self.stamp())
            e(salu("s_lshl_b32", s_t0, "s2", "2")); e(salu("s_add_u32", s_t0, s_t0, s_w)); e(salu("s_lshl_b32", s_t0, s_t0, "8")); e(salu("s_add_u32", s_t0, s_t0, str(WS_DIAG)))
            e(valu("v_lshlrev_b32", vT[0], "2", vLane)); e(vstore("buffer_store_dword", vStamp, vT[0], sWs, s_t0))
        if self.amp:
            e(wait_vm0()); e(self.stamp())
            e(raw("s_memrealtime s[96:97]")); e(wait_lgkm0())
            e(salu("s_sub_u32", s_t0, "s100", "s98")); e(salu("s_mul_i32", s_t0, s_t0, "10")); e(salu("s_min_u32", s_t0, s_t0, "100000"))
            e(label("L_amp")); e(raw("s_memrealtime s[6:7]")); e(wait_lgkm0())
            e(salu("s_sub_u32", s_t1, "s6", "s96")); e(salu("s_cmp_lt_u32", s_t1, s_t0)); e(raw("s_cbranch_scc1 L_amp"))
        e(label("L_end")); e(raw("s_endpgm"))
        self._epi1 = epi(1)

    def side_paths(self):
        out = ""
        st = Stream(); e = st.emit
        e(label("L_w3")); e(nop(7)); e(self._epi1); e(raw("s_branch L_opdone")); out += st.text()
        st = Stream(); e = st.emit
        e(label("L_gowait")); e(salu("s_mov_b32", s_spin, "0")); e(salu("s_lshl_b32", s_t1, s_b, "2")); e(label("L_gow1"))
        e(raw(f"s_load_dword {s_pv}, s[52:53], {s_t1} glc")); e(salu("s_add_u32", s_spin, s_spin, "1")); e(wait_lgkm0())
        e(salu("s_cmp_gt_u32", s_spin, "0x100000")); e(raw("s_cbranch_scc1 L_go"))
        e(salu("s_cmp_eq_u32", s_pv, "0")); e(raw("s_cbranch_scc1 L_gow1")); e(raw("s_branch L_go")); out += st.text()
        st = Stream(); e = st.emit
        e(label("L_rescale"))
        for q in range(3):
            for u in range(4):
                for r in range(4): e(valu("v_mul_f32", f"v{O(u,q)+r}", f"v{O(u,q)+r}", f"v{LT0+q}"))
        e(raw("s_branch L_rescaled")); out += st.text()
        st = Stream(); e = st.emit
        e(label("L_fallback"))
        e(salu("s_cmp_lg_u32", s_pass, "0")); e(raw("s_cbranch_scc1 L_checked"))
        e(salu("s_mov_b32", s_pass, "1"))
        e(raw("s_waitcnt vmcnt(0) lgkmcnt(0)")); e(nop(15)); e(barrier())
        T0, T1, T2 = vT[0], vT[1], vT[2]
        e(valu("v_and_b32", T0, "15", vLane)); e(valu("v_lshlrev_b32", T0, "9", T0)); e(valu("v_lshrrev_b32", T1, "4", vLane)); e(valu("v_lshl_add_u32", T0, T1, "4", T0))
        e(salu("s_lshl_b32", s_t1, s_w, "13")); e(salu("s_sub_u32", s_t1, s_kb, s_t1)); e(salu("s_mov_b32", s_t2, "0"))
        for q in range(6): e(valu("v_mov_b32", vm(q), "0xff800000"))
        e(label("L_fb1"))
        for ks in range(8): e(vload("buffer_load_dwordx4", a4(aK(ks)), T0, sK, s_t1, ks*64))
        e(self.mf_a(S0))
        for q in range(6):
            e(valu("v_max3_f32", vm(q), vm(q), f"v{S(q)}", f"v{S(q)+1}")); e(valu("v_max3_f32", vm(q), vm(q), f"v{S(q)+2}", f"v{S(q)+3}"))
        e(salu("s_add_u32", s_t1, s_t1, "8192")); e(salu("s_add_u32", s_t2, s_t2, "1")); e(salu("s_cmp_lt_u32", s_t2, "32")); e(raw("s_cbranch_scc1 L_fb1"))
        for q in range(6):
            for op in ("v_permlane32_swap_b32", "v_permlane16_swap_b32"):
                e(valu("v_mov_b32", T1, vm(q))); e(valu(op, T1, vm(q))); e(valu("v_max_f32", vm(q), vm(q), T1))
            e(valu("v_mul_f32", vm(q), s_c, vm(q))); e(valu("v_sub_f32", vm(q), "0", vm(q)))
        e(self.dma_k(0)); e(self.dma_k(1)); e(self.dma_v(0))
        e(raw("s_waitcnt vmcnt(0) lgkmcnt(0)")); e(nop(7)); e(raw("s_branch L_attn")); out += st.text()
        return out

    def build(self):
        self.PFL = 3
        self.setup(); self.qproj(); self.attention(); self.tail()
        body = self.st.text() + self.side_paths()
        hdr = open("cdna_kernels/" + NAME + ".s.ref").read().split("; Override launch")[0]
        hdr += f"; @launch grid=(256,1,1) block=(256,1,1) lds={LDS_BYTES}\n"
        txt = hdr + f'.amdgcn_target "amdgcn-amd-amdhsa--gfx950"\n.text\n.globl {KN}\n.p2align 8\n.type {KN},@function\n{KN}:\n' + body
        txt += f"; pad so that the code prefetch stays inside the section\n.fill {max(0, (128*128*self.PFL + 4096)//4 - self.st.count)}, 4, 0xbf800000\ns_endpgm\n" if self.prefetch else ""
        txt += f""".section .rodata,"a"
.p2align 6
.amdhsa_kernel {KN}
  .amdhsa_next_free_vgpr 512
  .amdhsa_next_free_sgpr 102
  .amdhsa_accum_offset 256
  .amdhsa_group_segment_fixed_size 0
  .amdhsa_kernarg_size 64
  .amdhsa_user_sgpr_count 2
  .amdhsa_user_sgpr_kernarg_segment_ptr 1
  .amdhsa_system_sgpr_workgroup_id_x 1
.end_amdhsa_kernel
"""
        return txt

if __name__ == "__main__":
    g = Gen(); t = g.build()
    open("k_main.s", "w").write(t)
    print("instrs", g.st.count, "nops inserted", g.st.nops)
    open("k_diag.s", "w").write(Gen(diag=True).build())
    open("k_fb.s", "w").write(Gen(force_fallback=True).build())
    open("k_nopf.s", "w").write(Gen(prefetch=False).build())
    for a in ((0, 14), (0, 1), (1, 2), (2, 6), (6, 14)):
        open(f"k_amp{a[0]}_{a[1]}.s", "w").write(Gen(amp=a).build())
```
